```python
import torch

def _softmax(x, axis=-1):
    return torch.softmax(x, dim=axis)
def _gelu(x):
    return torch.nn.functional.gelu(x, approximate="tanh")
def _silu(x):
    return torch.nn.functional.silu(x)
def _sigmoid(x):
    return torch.sigmoid(x)
def _layernorm(x, axis=-1, eps=1e-5):
    m = x.mean(dim=axis, keepdim=True)
    v = x.var(dim=axis, keepdim=True, unbiased=False)
    return (x - m) / torch.sqrt(v + eps)
def _scatter_add(tgt, idx, src, axis=0):
    return tgt.clone().index_add_(axis, idx, src)
def _segment_sum(src, seg, n):
    out = torch.zeros((n,) + src.shape[1:], dtype=src.dtype)
    return out.index_add_(0, seg, src)
def _pad(x, pw):
    flat = tuple(v for pair in reversed(pw) for v in pair)
    return torch.nn.functional.pad(x, flat)

kernel_name = 'gather_scatter__cheap_equivariant_egnn__graph'

def setup_inputs():

    _w = (lambda a: (lambda t: t.to(torch.bfloat16) if t.is_floating_point() else t)(torch.as_tensor(a)))
    N, deg, D, De = 10000, 64, 64, max(16, 1)
    E = N * deg
    return {
        "h": _w((lambda *s: torch.randn(*s, dtype=torch.bfloat16) * 0.1)(N, D)),
        "pos": _w((lambda *s: torch.randn(*s, dtype=torch.bfloat16) * 0.8)(N, 3)),
        "e_attr": _w((lambda *s: torch.randn(*s, dtype=torch.bfloat16) * 0.8)(E, De)),
        "src": _w((lambda lo, hi, *s: torch.randint(lo, hi, s))(0, N, E).to(torch.int64)),
        "dst": _w((lambda lo, hi, *s: torch.randint(lo, hi, s))(0, N, E).to(torch.int64)),
        "w_e": _w(0.1 * (lambda *s: torch.randn(*s, dtype=torch.bfloat16) * 0.8)(2 * D + 1 + De, D)),
        "w_x": _w(0.1 * (lambda *s: torch.randn(*s, dtype=torch.bfloat16) * 0.1)(D, 1)),
        "w_h": _w(0.1 * (lambda *s: torch.randn(*s, dtype=torch.bfloat16) * 0.1)(2 * D, D)),
    }

def reference(h, pos, e_attr, src, dst, w_e, w_x, w_h):
    N, D = h.shape[0], h.shape[1]
    diff = pos[dst] - pos[src]
    dist2 = torch.sum(diff * diff, axis=-1, keepdims=True)
    e_in = torch.concatenate([h[dst], h[src], dist2, e_attr], axis=-1)
    m_ij = _silu(e_in @ w_e)
    coord_scale = m_ij @ w_x
    pos_new = pos + _segment_sum(diff * coord_scale, dst, N)
    m_i = _segment_sum(m_ij, dst, N)
    h_new = h + _silu(torch.concatenate([h, m_i], axis=-1) @ w_h)
    return h_new, pos_new
```

```python
import sys
NAME = "gather_scatter__cheap_equivariant_egnn__graph"
N, E = 10000, 640000
NB, GA, CAP, BN = 250, 250, 32, 40
CH = E // GA
ENT, CNT, POS4, OVC, OVL = 0, 0x1000000, 0x1100000, 0x1200000, 0x1300000
WS_BYTES = 268435456
L = []
import os
DEBUG = int(os.environ.get('DBG','0'))
DBGOFF = int(os.environ.get('DBGOFF','0'))
def o(s): L.append("    " + s)
def lab(s): L.append(s + ":")

hdr = open(sys.argv[1]).read().split("\n")
head = [l for l in hdr if l.startswith(";") and "@launch" not in l and "Override" not in l and "grid=ceil" not in l]
out = head + [
 f"; @launch kernel=egnn_bin_kernel grid=({GA},1,1) block=(512,1,1) lds=1280",
 f"; @launch kernel={NAME}_kernel grid=({NB},1,1) block=(512,1,1) lds=98304",
 '.amdgcn_target "amdgcn-amd-amdhsa--gfx950"', ".text"]

def srd(d, plo, nbytes):
    o(f"s_mov_b32 s{d}, s{plo}"); o(f"s_and_b32 s{d+1}, s{plo+1}, 0xffff")
    o(f"s_mov_b32 s{d+2}, {nbytes}"); o(f"s_mov_b32 s{d+3}, 0x00020000")

L += [".globl egnn_bin_kernel", ".p2align 8", ".type egnn_bin_kernel,@function", "egnn_bin_kernel:"]
o(f"s_cmp_ge_u32 s2, {GA}"); o("s_cbranch_scc1 A_done")
o("s_load_dwordx2 s[4:5], s[0:1], 8")
o("s_load_dwordx4 s[8:11], s[0:1], 24")
o("s_load_dwordx2 s[6:7], s[0:1], 80")
o("s_waitcnt lgkmcnt(0)")
srd(12, 8, E*4); srd(16, 10, E*4); srd(20, 6, WS_BYTES); srd(24, 4, N*6)
o(f"s_mul_i32 s3, s2, {CH}")
o("v_lshlrev_b32 v1, 2, v0")
o("v_mov_b32 v2, 0")
o("v_cmp_gt_u32 vcc, 0x140, v0"); o("s_and_saveexec_b64 s[28:29], vcc")
o("ds_write_b32 v1, v2")
o("s_mov_b64 exec, s[28:29]")
o("v_add_u32 v3, s3, v0")
o("v_lshlrev_b32 v4, 2, v3")
for i in range(5):
    o(f"s_movk_i32 s34, {i*2048}")
    o(f"buffer_load_dword v{10+i}, v4, s[16:19], s34 offen")
    o(f"buffer_load_dword v{18+i}, v4, s[12:15], s34 offen")
o("s_waitcnt lgkmcnt(0)"); o("s_barrier")
o("s_mov_b32 s30, 52429"); o(f"s_mul_i32 s31, s2, {CAP*8}")
o(f"s_mul_i32 s33, s2, {CH*8}"); o(f"s_add_u32 s33, s33, {OVL}")
for i in range(5):
    o(f"s_waitcnt vmcnt({8-2*i})")
    o(f"v_mul_u32_u24 v5, s30, v{10+i}"); o("v_lshrrev_b32 v5, 21, v5")
    o("v_lshlrev_b32 v6, 2, v5"); o("v_mov_b32 v7, 1")
    o("ds_add_rtn_u32 v8, v6, v7")
    o(f"v_lshlrev_b32 v9, 16, v{10+i}"); o(f"v_or_b32 v27, v9, v{18+i}")
    o(f"v_add_u32 v26, {i*512}, v3")
    o("s_waitcnt lgkmcnt(0)")
    o(f"v_mul_u32_u24 v9, {GA*CAP*8}, v5"); o("v_lshl_add_u32 v9, v8, 3, v9"); o("v_add_u32 v9, s31, v9")
    o(f"v_cmp_gt_u32 vcc, {CAP}, v8"); o("s_and_saveexec_b64 s[28:29], vcc")
    o("buffer_store_dwordx2 v[26:27], v9, s[20:23], 0 offen")
    o("s_andn2_b64 exec, s[28:29], exec"); o(f"s_cbranch_execz A_skip{i}")
    o("v_mov_b32 v6, 1024"); o("ds_add_rtn_u32 v8, v6, v7"); o("s_waitcnt lgkmcnt(0)")
    o("v_lshl_add_u32 v9, v8, 3, s33")
    o("buffer_store_dwordx2 v[26:27], v9, s[20:23], 0 offen")
    lab(f"A_skip{i}")
    o("s_mov_b64 exec, s[28:29]")
o("s_waitcnt lgkmcnt(0)"); o("s_barrier")
o(f"v_cmp_gt_u32 vcc, {NB}, v0"); o("s_and_saveexec_b64 s[28:29], vcc")
o("ds_read_b32 v5, v1"); o("s_waitcnt lgkmcnt(0)")
o(f"v_min_u32 v5, {CAP}, v5")
o(f"v_mul_u32_u24 v6, {GA*4}, v0"); o("s_lshl_b32 s32, s2, 2"); o(f"s_add_u32 s32, s32, {CNT}")
o("v_add_u32 v6, s32, v6")
o("buffer_store_dword v5, v6, s[20:23], 0 offen")
o("s_mov_b64 exec, s[28:29]")
o("v_cmp_eq_u32 vcc, 0, v0"); o("s_and_saveexec_b64 s[28:29], vcc")
o("v_mov_b32 v6, 1024"); o("ds_read_b32 v5, v6"); o("s_waitcnt lgkmcnt(0)")
o("s_lshl_b32 s32, s2, 2"); o(f"s_add_u32 s32, s32, {OVC}"); o("v_mov_b32 v6, s32")
o("buffer_store_dword v5, v6, s[20:23], 0 offen")
o("s_mov_b64 exec, s[28:29]")
o(f"v_cmp_gt_u32 vcc, {BN}, v0"); o("s_and_saveexec_b64 s[28:29], vcc")
o(f"s_mul_i32 s32, s2, {BN}"); o("v_add_u32 v5, s32, v0"); o("v_mul_u32_u24 v6, 6, v5")
for c in range(3): o(f"buffer_load_ushort v{12+c}, v6, s[24:27], 0 offen offset:{2*c}")
o("s_waitcnt vmcnt(0)")
for c in range(3): o(f"v_lshlrev_b32 v{12+c}, 16, v{12+c}")
o("v_mov_b32 v15, 0"); o("v_lshlrev_b32 v6, 4, v5"); o(f"v_add_u32 v6, {POS4}, v6")
o("buffer_store_dwordx4 v[12:15], v6, s[20:23], 0 offen")
lab("A_done"); o("s_endpgm")

P1, ACC, NC, FLG, LIST = 0, 13056, 23936, 24704, 24832
RS = 272
L += [f".globl {NAME}_kernel", ".p2align 8", f".type {NAME}_kernel,@function", f"{NAME}_kernel:"]
o(f"s_cmp_ge_u32 s2, {NB}"); o("s_cbranch_scc1 B_done")
o("s_load_dwordx2 s[4:5], s[0:1], 0")
o("s_load_dwordx2 s[6:7], s[0:1], 16")
o("s_load_dwordx4 s[8:11], s[0:1], 40")
o("s_load_dwordx4 s[12:15], s[0:1], 56")
o("s_load_dwordx2 s[16:17], s[0:1], 80")
o("s_load_dwordx2 s[18:19], s[0:1], 8")
o("s_waitcnt lgkmcnt(0)")
srd(20, 4, N*128); srd(24, 6, E*32); srd(28, 8, 145*128); srd(32, 10, 128); srd(36, 12, 128*128)
srd(40, 14, 1340000); srd(44, 16, WS_BYTES); srd(48, 18, N*6)
o("v_and_b32 v1, 15, v0")
o("v_bfe_u32 v2, v0, 4, 2")
o("v_lshrrev_b32 v3, 6, v0"); o("s_nop 0"); o("v_readfirstlane_b32 s3, v3")
o(f"s_mul_i32 s52, s2, {BN}")
o("v_cmp_gt_u32 s[54:55], 2, v2")
o("v_cmp_eq_u32 s[56:57], 2, v2")
o("v_mov_b32 v4, 0")
for i in range(6):
    o(f"v_lshlrev_b32 v5, 2, v0"); o(f"v_add_u32 v5, {ACC + i*2048}, v5")
    o(f"v_cmp_gt_u32 vcc, {ACC+10880}, v5"); o("s_and_saveexec_b64 s[58:59], vcc"); o("ds_write_b32 v5, v4"); o("s_mov_b64 exec, s[58:59]")
o(f"v_mov_b32 v5, {FLG}"); o("ds_write_b32 v5, v4")
o("s_waitcnt lgkmcnt(0)"); o("s_barrier")
o(f"v_cmp_gt_u32 vcc, {GA}, v0"); o("s_and_saveexec_b64 s[58:59], vcc")
o("v_lshlrev_b32 v5, 2, v0"); o(f"v_add_u32 v5, {OVC}, v5"); o("buffer_load_dword v6, v5, s[44:47], 0 offen")
o("s_waitcnt vmcnt(0)"); o("v_cmp_ne_u32 vcc, 0, v6"); o("s_and_b64 exec, exec, vcc")
o(f"v_mov_b32 v5, {FLG}"); o("v_mov_b32 v6, 1"); o("ds_write_b32 v5, v6")
o("s_mov_b64 exec, s[58:59]")
def wfrag(srdb, dst, krow_of, ft, tmp="v5"):
    pass
def load_frag(sb, dst, rowbase, ft):
    o(f"v_lshlrev_b32 v5, 10, v2"); o("v_lshl_add_u32 v5, v1, 1, v5"); o(f"v_add_u32 v5, {rowbase*128 + ft*32}, v5")
    for j in range(8):
        o(f"buffer_load_ushort v{200 + j}, v5, s[{sb}:{sb+3}], 0 offen offset:{j*128}")
    o("s_waitcnt vmcnt(0)")
    for q in range(4):
        o(f"v_lshl_or_b32 v{dst+q}, v{201+2*q}, 16, v{200+2*q}")
for ks in range(2):
    for ft in range(4): load_frag(28, 64 + ks*16 + ft*4, 64 + ks*32, ft)
for ft in range(4):
    d = 96 + ft*4
    for r in range(4): o(f"v_mov_b32 v{d+r}, 0")
    o("s_mov_b64 s[58:59], exec"); o("s_mov_b64 exec, s[54:55]")
    load_frag(28, d, 129, ft)
    o("s_mov_b64 exec, s[56:57]")
    o(f"v_lshlrev_b32 v5, 1, v1"); o(f"v_add_u32 v5, {128*128 + ft*32}, v5"); o(f"buffer_load_ushort v{d}, v5, s[28:31], 0 offen")
    o("s_mov_b64 exec, s[58:59]")
for ft in range(4):
    o(f"v_lshlrev_b32 v5, 3, v2");
    for r in range(4): o(f"buffer_load_ushort v{112+ft*4+r}, v5, s[32:35], 0 offen offset:{ft*32 + 2*r}")
o("s_cmp_gt_u32 s3, 2"); o("s_cbranch_scc1 B_p1done")
for ks in range(2):
    for ft in range(4): load_frag(28, 24 + ks*16 + ft*4, ks*32, ft)
o("s_lshl_b32 s60, s3, 4"); o("s_add_u32 s60, s60, s52"); o("v_add_u32 v6, s60, v1")
o("v_lshlrev_b32 v6, 7, v6"); o("v_lshl_add_u32 v6, v2, 4, v6")
o("buffer_load_dwordx4 v[56:59], v6, s[20:23], 0 offen"); o("buffer_load_dwordx4 v[60:63], v6, s[20:23], 0 offen offset:64")
o("s_waitcnt vmcnt(0)")
for ft in range(4):
    o(f"v_mfma_f32_16x16x32_bf16 v[{8+ft*4}:{11+ft*4}], v[{24+ft*4}:{27+ft*4}], v[56:59], 0")
    o(f"v_mfma_f32_16x16x32_bf16 v[{8+ft*4}:{11+ft*4}], v[{40+ft*4}:{43+ft*4}], v[60:63], v[{8+ft*4}:{11+ft*4}]")
o("s_nop 15")
o("s_lshl_b32 s60, s3, 4"); o("v_add_u32 v6, s60, v1"); o(f"v_mul_u32_u24 v6, {RS}, v6"); o("v_lshl_add_u32 v6, v2, 4, v6")
for ft in range(4): o(f"ds_write_b128 v6, v[{8+ft*4}:{11+ft*4}] offset:{P1 + ft*64}")
lab("B_p1done")
o("s_waitcnt vmcnt(0)")
for i in range(16): o(f"v_lshlrev_b32 v{112+i}, 16, v{112+i}")
o("s_waitcnt lgkmcnt(0)"); o("s_barrier")
o(f"v_mov_b32 v5, {FLG}"); o("ds_read_b32 v5, v5"); o("s_waitcnt lgkmcnt(0)"); o("v_readfirstlane_b32 s61, v5")
o("s_mov_b32 s62, 0")
lab("B_round")
o("s_cmp_eq_u32 s62, 0"); o("s_cbranch_scc0 B_src_ovf")
o(f"s_mul_i32 s63, s2, {GA*CAP*8}"); o("s_mov_b32 s64, 0"); o("s_branch B_src_done")
lab("B_src_ovf")
o("s_sub_u32 s65, s62, 1"); o("s_lshl_b32 s66, s65, 2"); o(f"s_add_u32 s66, s66, {OVC}")
o("v_mov_b32 v5, s66"); o("buffer_load_dword v5, v5, s[44:47], 0 offen"); o("s_waitcnt vmcnt(0)"); o("v_readfirstlane_b32 s64, v5")
o("s_cmp_eq_u32 s64, 0"); o("s_cbranch_scc1 B_next")
o(f"s_mul_i32 s63, s65, {CH*8}"); o(f"s_add_u32 s63, s63, {OVL}")
lab("B_src_done")
o("v_cmp_gt_u32 vcc, 64, v0"); o("s_and_saveexec_b64 s[58:59], vcc")
o("v_lshlrev_b32 v5, 2, v0"); o("v_mov_b32 v4, 0"); o(f"ds_write_b32 v5, v4 offset:{NC}"); o("s_mov_b64 exec, s[58:59]")
o("s_waitcnt lgkmcnt(0)"); o("s_barrier")
o(f"s_mul_i32 s60, s2, {GA*4}"); o(f"s_add_u32 s60, s60, {CNT}")
for i in range(16):
    o(f"v_add_u32 v5, {i*512}, v0")
    o("v_lshl_add_u32 v6, v5, 3, s63"); o(f"buffer_load_dwordx2 v[{8+2*i}:{9+2*i}], v6, s[44:47], 0 offen")
    o("v_lshrrev_b32 v6, 5, v5"); o("v_lshl_add_u32 v6, v6, 2, s60"); o(f"buffer_load_dword v{40+i}, v6, s[44:47], 0 offen")
o("s_waitcnt vmcnt(0)")
o("s_mov_b32 s67, 52429"); o("s_movk_i32 s90, 8000"); o("s_movk_i32 s91, 2560"); o("v_mov_b32 v56, 252"); o("v_mov_b32 v57, 1")
for i in range(16):
    o(f"v_add_u32 v5, {i*512}, v0")
    o("s_cmp_eq_u32 s62, 0"); o(f"s_cbranch_scc0 B_v{i}")
    o("v_and_b32 v6, 31, v5"); o(f"v_cmp_lt_u32 vcc, v6, v{40+i}")
    o(f"v_cmp_gt_u32 s[58:59], s90, v5"); o(f"s_branch B_w{i}")
    lab(f"B_v{i}")
    o("v_cmp_gt_u32 vcc, s64, v5"); o(f"v_cmp_gt_u32 s[58:59], s91, v5")
    lab(f"B_w{i}")
    o("s_and_b64 vcc, vcc, s[58:59]")
    o(f"v_lshrrev_b32 v6, 16, v{9+2*i}"); o("v_mul_u32_u24 v7, s67, v6"); o("v_lshrrev_b32 v7, 21, v7")
    o("v_cmp_eq_u32 s[58:59], s2, v7"); o("s_and_b64 vcc, vcc, s[58:59]")
    o("v_subrev_u32 v6, s52, v6"); o("v_lshlrev_b32 v6, 2, v6"); o("s_nop 0")
    o(f"v_cndmask_b32 v{40+i}, v56, v6, vcc")
    o(f"ds_add_u32 v{40+i}, v57 offset:{NC}")
o("s_waitcnt lgkmcnt(0)"); o("s_barrier")
o("s_cmp_lg_u32 s3, 0"); o("s_cbranch_scc1 B_pfx")
o("v_lshlrev_b32 v5, 2, v0"); o(f"ds_read_b32 v6, v5 offset:{NC}"); o("s_waitcnt lgkmcnt(0)")
o("v_add_u32 v6, 15, v6"); o("v_and_b32 v6, 0xfffffff0, v6"); o("v_mov_b32 v7, v6")
for sh in (1, 2, 4, 8):
    o("s_nop 1"); o(f"v_add_u32_dpp v7, v7, v7 row_shr:{sh} row_mask:0xf bank_mask:0xf bound_ctrl:0")
o("s_nop 1"); o("v_add_u32_dpp v7, v7, v7 row_bcast:15 row_mask:0xa bank_mask:0xf")
o("s_nop 1"); o("v_add_u32_dpp v7, v7, v7 row_bcast:31 row_mask:0xc bank_mask:0xf")
o("v_sub_u32 v7, v7, v6")
o(f"ds_write_b32 v5, v7 offset:{NC+256}"); o(f"ds_write_b32 v5, v7 offset:{NC+512}")
lab("B_pfx")
o("s_waitcnt lgkmcnt(0)"); o("s_barrier")
for i in range(16):
    o(f"ds_add_rtn_u32 v6, v{40+i}, v57 offset:{NC+512}"); o("s_waitcnt lgkmcnt(0)")
    o("v_lshlrev_b32 v6, 3, v6"); o(f"ds_write_b64 v6, v[{8+2*i}:{9+2*i}] offset:{LIST}")
o("s_waitcnt lgkmcnt(0)"); o("s_barrier")
o("s_mov_b32 s68, s3")
lab("B_node")
o(f"s_cmp_ge_u32 s68, {BN}"); o("s_cbranch_scc1 B_nodes_done")
o("s_lshl_b32 s60, s68, 2"); o("v_mov_b32 v5, s60")
o(f"ds_read_b32 v6, v5 offset:{NC}"); o(f"ds_read_b32 v7, v5 offset:{NC+256}")
o(f"s_mul_i32 s60, s68, {RS}"); o("v_lshl_add_u32 v5, v2, 4, s60")
for ft in range(4): o(f"ds_read_b128 v[{128+ft*4}:{131+ft*4}], v5 offset:{P1+ft*64}")
o("s_add_u32 s60, s52, s68"); o("s_lshl_b32 s60, s60, 4"); o(f"s_add_u32 s60, s60, {POS4}"); o("v_mov_b32 v5, s60")
o("buffer_load_dwordx4 v[144:147], v5, s[44:47], 0 offen")
o("s_waitcnt lgkmcnt(0)"); o("v_readfirstlane_b32 s69, v6"); o("v_readfirstlane_b32 s86, v7")
for i in range(19): o(f"v_mov_b32 v{148+i}, 0")
o("s_mov_b32 s87, 0")
lab("B_tile")
o("s_cmp_ge_u32 s87, s69"); o("s_cbranch_scc1 B_tiles_done")
o("v_add_u32 v5, s87, v1"); o("v_cmp_gt_u32 s[88:89], s69, v5")
o("v_add_u32 v5, s86, v5"); o("v_lshlrev_b32 v5, 3, v5"); o(f"ds_read_b64 v[6:7], v5 offset:{LIST}"); o("s_waitcnt lgkmcnt(0)")
o("v_and_b32 v8, 0xffff, v7")
o("v_and_b32 v9, 1, v2"); o("v_lshlrev_b32 v9, 4, v9"); o("v_lshl_add_u32 v9, v6, 5, v9")
o("buffer_load_dwordx4 v[16:19], v9, s[24:27], 0 offen")
o("v_lshlrev_b32 v9, 7, v8"); o("v_lshl_add_u32 v9, v2, 4, v9")
o("buffer_load_dwordx4 v[20:23], v9, s[20:23], 0 offen"); o("buffer_load_dwordx4 v[24:27], v9, s[20:23], 0 offen offset:64")
o("v_lshlrev_b32 v9, 4, v8"); o(f"v_add_u32 v9, {POS4}, v9"); o("buffer_load_dwordx4 v[28:31], v9, s[44:47], 0 offen")
o("v_mov_b32 v10, 0xc6ea6000")
for i in range(16): o(f"v_cndmask_b32 v{32+i}, v10, v{128+i}, s[88:89]")
o("s_waitcnt vmcnt(0)")
for c in range(3): o(f"v_sub_f32 v{28+c}, v{144+c}, v{28+c}"); o(f"v_cndmask_b32 v{28+c}, 0, v{28+c}, s[88:89]")
o("v_mul_f32 v10, v28, v28"); o("v_fmac_f32 v10, v29, v29"); o("v_fmac_f32 v10, v30, v30")
o("v_cvt_pk_bf16_f32 v10, v10, 0")
o("v_cndmask_b32 v16, v10, v16, s[54:55]")
for r in range(1, 4): o(f"v_cndmask_b32 v{16+r}, 0, v{16+r}, s[54:55]")
o("v_cmp_gt_u32 vcc, 3, v2"); o("s_nop 1"); o("v_cndmask_b32 v16, 0, v16, vcc"); o("s_nop 1")
for ft in range(4):
    D = f"v[{32+ft*4}:{35+ft*4}]"
    o(f"v_mfma_f32_16x16x32_bf16 {D}, v[{64+ft*4}:{67+ft*4}], v[20:23], {D}")
    o(f"v_mfma_f32_16x16x32_bf16 {D}, v[{80+ft*4}:{83+ft*4}], v[24:27], {D}")
    o(f"v_mfma_f32_16x16x32_bf16 {D}, v[{96+ft*4}:{99+ft*4}], v[16:19], {D}")
o("s_nop 7"); o("v_mov_b32 v11, 0")
for i in range(16):
    o(f"v_mul_f32 v48, 0xbfb8aa3b, v{32+i}"); o("v_exp_f32 v48, v48"); o("s_nop 0"); o("v_add_f32 v48, 1.0, v48")
    o("v_rcp_f32 v48, v48"); o("s_nop 0"); o(f"v_mul_f32 v48, v{32+i}, v48")
    o(f"v_add_f32 v{148+i}, v{148+i}, v48"); o(f"v_fmac_f32 v11, v48, v{112+i}")
for c in range(3): o(f"v_fmac_f32 v{164+c}, v{28+c}, v11")
o("s_add_u32 s87, s87, 16"); o("s_branch B_tile")
lab("B_tiles_done")
for sh in (1, 2, 4, 8):
    for i in range(19):
        o(f"v_add_f32_dpp v{148+i}, v{148+i}, v{148+i} row_shr:{sh} row_mask:0xf bank_mask:0xf bound_ctrl:0")
    o("s_nop 1")
o("v_cmp_eq_u32 vcc, 15, v1"); o("s_and_saveexec_b64 s[58:59], vcc")
o(f"s_mul_i32 s60, s68, {RS}"); o("v_lshl_add_u32 v5, v2, 4, s60")
for i in range(16): o(f"ds_add_f32 v5, v{148+i} offset:{ACC + (i//4)*64 + (i%4)*4}")
o("v_mov_b32 v5, s60")
for c in range(3): o(f"ds_add_f32 v5, v{164+c} offset:{ACC + 256 + 4*c}")
o("s_mov_b64 exec, s[58:59]")
o("s_add_u32 s68, s68, 8"); o("s_branch B_node")
lab("B_nodes_done")
o("s_waitcnt lgkmcnt(0)"); o("s_barrier")
lab("B_next")
o("s_cmp_eq_u32 s61, 0"); o("s_cbranch_scc1 B_final")
o("s_add_u32 s62, s62, 1"); o(f"s_cmp_le_u32 s62, {GA}"); o("s_cbranch_scc1 B_round")
lab("B_final")
if DEBUG:
    o("s_cmp_lg_u32 s2, 0"); o("s_cbranch_scc1 B_nodbg")
    o("s_load_dwordx2 s[92:93], s[0:1], 72"); o("s_waitcnt lgkmcnt(0)")
    srd(96, 92, 256)
    o("v_cmp_gt_u32 vcc, 16, v0"); o("s_and_saveexec_b64 s[58:59], vcc")
    o("v_lshlrev_b32 v5, 2, v0"); o(f"ds_read_b32 v6, v5 offset:{DBGOFF}"); o("s_waitcnt lgkmcnt(0)")
    o("buffer_store_dword v6, v5, s[96:99], 0 offen"); o("s_mov_b64 exec, s[58:59]")
    lab("B_nodbg")
o("s_cmp_gt_u32 s3, 2"); o("s_cbranch_scc1 B_pos")
o("s_lshl_b32 s60, s3, 4"); o("v_add_u32 v6, s60, v1")
o("v_add_u32 v7, s52, v6"); o("v_lshlrev_b32 v7, 7, v7")
o("v_lshl_add_u32 v8, v2, 4, v7")
o("buffer_load_dwordx4 v[16:19], v8, s[20:23], 0 offen"); o("buffer_load_dwordx4 v[20:23], v8, s[20:23], 0 offen offset:64")
o(f"v_mul_u32_u24 v9, {RS}, v6"); o("v_lshl_add_u32 v9, v2, 5, v9")
for q in range(4): o(f"ds_read_b128 v[{32+q*4}:{35+q*4}], v9 offset:{ACC + (q//2)*128 + (q%2)*16}")
o("s_waitcnt lgkmcnt(0)")
for q in range(8): o(f"v_cvt_pk_bf16_f32 v{24+q}, v{32+2*q}, v{33+2*q}")
for ft in range(4):
    for ks in range(4): load_frag(36, 32 + ks*4, ks*32, ft)
    o("s_waitcnt vmcnt(0)")
    D = f"v[{48}:{51}]"
    o(f"v_mfma_f32_16x16x32_bf16 {D}, v[32:35], v[16:19], 0")
    o(f"v_mfma_f32_16x16x32_bf16 {D}, v[36:39], v[20:23], {D}")
    o(f"v_mfma_f32_16x16x32_bf16 {D}, v[40:43], v[24:27], {D}")
    o(f"v_mfma_f32_16x16x32_bf16 {D}, v[44:47], v[28:31], {D}")
    o(f"v_lshl_add_u32 v10, v2, 3, v7"); o(f"buffer_load_dwordx2 v[52:53], v10, s[20:23], 0 offen offset:{ft*32}")
    o("s_nop 7"); o("s_waitcnt vmcnt(0)")
    for r in range(4):
        o(f"v_mul_f32 v54, 0xbfb8aa3b, v{48+r}"); o("v_exp_f32 v54, v54"); o("s_nop 0"); o("v_add_f32 v54, 1.0, v54")
        o("v_rcp_f32 v54, v54"); o("s_nop 0"); o(f"v_mul_f32 v54, v{48+r}, v54")
        o("v_cvt_pk_bf16_f32 v54, v54, 0"); o("v_lshlrev_b32 v54, 16, v54")
        o(f"v_lshlrev_b32 v55, 16, v{52+r//2}" if r % 2 == 0 else f"v_and_b32 v55, 0xffff0000, v{52+r//2}")
        o(f"v_add_f32 v{48+r}, v54, v55")
    o("v_cvt_pk_bf16_f32 v48, v48, v49"); o("v_cvt_pk_bf16_f32 v49, v50, v51")
    o(f"v_cmp_gt_u32 vcc, {BN}, v6"); o("s_and_saveexec_b64 s[58:59], vcc")
    o(f"buffer_store_dwordx2 v[48:49], v10, s[40:43], 0 offen offset:{ft*32}")
    o("s_mov_b64 exec, s[58:59]"); o("s_nop 2")
lab("B_pos")
o(f"v_cmp_gt_u32 vcc, {BN}, v0"); o("s_and_saveexec_b64 s[58:59], vcc")
o("v_add_u32 v5, s52, v0"); o("v_mul_u32_u24 v6, 6, v5"); o(f"v_mul_u32_u24 v7, {RS}, v0")
for c in range(3):
    o(f"buffer_load_ushort v{8+c}, v6, s[48:51], 0 offen offset:{2*c}"); o(f"ds_read_b32 v{12+c}, v7 offset:{ACC+256+4*c}")
o("s_waitcnt vmcnt(0) lgkmcnt(0)")
for c in range(3):
    o(f"v_lshlrev_b32 v{8+c}, 16, v{8+c}"); o(f"v_add_f32 v{8+c}, v{8+c}, v{12+c}"); o(f"v_cvt_pk_bf16_f32 v{8+c}, v{8+c}, 0")
    o(f"v_add_u32 v15, {1280000+2*c}, v6"); o(f"buffer_store_short v{8+c}, v15, s[40:43], 0 offen")
lab("B_done"); o("s_endpgm")

def kd(name, vg):
    return ['.section .rodata,"a"', ".p2align 6", f".amdhsa_kernel {name}", f"  .amdhsa_next_free_vgpr {vg}",
      "  .amdhsa_next_free_sgpr 102", f"  .amdhsa_accum_offset {vg}", "  .amdhsa_group_segment_fixed_size 0",
      "  .amdhsa_kernarg_size 88", "  .amdhsa_user_sgpr_count 2", "  .amdhsa_user_sgpr_kernarg_segment_ptr 1",
      "  .amdhsa_system_sgpr_workgroup_id_x 1", ".end_amdhsa_kernel"]
out += L + kd("egnn_bin_kernel", 32) + kd(NAME + "_kernel", 208)
open(sys.argv[2], "w").write("\n".join(out) + "\n")
```

```python
import sys
NAME = "gather_scatter__cheap_equivariant_egnn__graph"
N, E = 10000, 640000
NB, GA, CAP, BN = 250, 250, 32, 40
CH = E // GA
ENT, CNT, POS4, OVC, OVL = 0, 0x1000000, 0x1100000, 0x1200000, 0x1300000
WS_BYTES = 268435456
FRAG = 0x1800000
L = []
import os
DEBUG = int(os.environ.get('DBG','0'))
DBGOFF = int(os.environ.get('DBGOFF','0'))
def o(s): L.append("    " + s)
def lab(s): L.append(s + ":")

hdr = open(sys.argv[1]).read().split("\n")
head = [l for l in hdr if l.startswith(";") and "@launch" not in l and "Override" not in l and "grid=ceil" not in l]
out = head + [
 f"; @launch kernel=egnn_bin_kernel grid=({GA},1,1) block=(512,1,1) lds=1280",
 f"; @launch kernel={NAME}_kernel grid=({NB},1,1) block=(512,1,1) lds=98304",
 '.amdgcn_target "amdgcn-amd-amdhsa--gfx950"', ".text"]

def srd(d, plo, nbytes):
    o(f"s_mov_b32 s{d}, s{plo}"); o(f"s_and_b32 s{d+1}, s{plo+1}, 0xffff")
    o(f"s_mov_b32 s{d+2}, {nbytes}"); o(f"s_mov_b32 s{d+3}, 0x00020000")

L += [".globl egnn_bin_kernel", ".p2align 8", ".type egnn_bin_kernel,@function", "egnn_bin_kernel:"]
o(f"s_cmp_ge_u32 s2, {GA}"); o("s_cbranch_scc1 A_done")
o("s_load_dwordx2 s[4:5], s[0:1], 8")
o("s_load_dwordx4 s[8:11], s[0:1], 24")
o("s_load_dwordx2 s[6:7], s[0:1], 80")
o("s_waitcnt lgkmcnt(0)")
srd(12, 8, E*4); srd(16, 10, E*4); srd(20, 6, WS_BYTES); srd(24, 4, N*6)
o(f"s_mul_i32 s3, s2, {CH}")
o("v_lshlrev_b32 v1, 2, v0")
o("v_mov_b32 v2, 0")
o("v_cmp_gt_u32 vcc, 0x140, v0"); o("s_and_saveexec_b64 s[28:29], vcc")
o("ds_write_b32 v1, v2")
o("s_mov_b64 exec, s[28:29]")
o("v_add_u32 v3, s3, v0")
o("v_lshlrev_b32 v4, 2, v3")
for i in range(5):
    o(f"s_movk_i32 s34, {i*2048}")
    o(f"buffer_load_dword v{10+i}, v4, s[16:19], s34 offen")
    o(f"buffer_load_dword v{18+i}, v4, s[12:15], s34 offen")
o("s_waitcnt lgkmcnt(0)"); o("s_barrier")
o("s_mov_b32 s30, 52429"); o(f"s_mul_i32 s31, s2, {CAP*8}")
o(f"s_mul_i32 s33, s2, {CH*8}"); o(f"s_add_u32 s33, s33, {OVL}")
for i in range(5):
    o(f"s_waitcnt vmcnt({8-2*i})")
    o(f"v_mul_u32_u24 v5, s30, v{10+i}"); o("v_lshrrev_b32 v5, 21, v5")
    o("v_lshlrev_b32 v6, 2, v5"); o("v_mov_b32 v7, 1")
    o("ds_add_rtn_u32 v8, v6, v7")
    o(f"v_lshlrev_b32 v9, 16, v{10+i}"); o(f"v_or_b32 v27, v9, v{18+i}")
    o(f"v_add_u32 v26, {i*512}, v3")
    o("s_waitcnt lgkmcnt(0)")
    o(f"v_mul_u32_u24 v9, {GA*CAP*8}, v5"); o("v_lshl_add_u32 v9, v8, 3, v9"); o("v_add_u32 v9, s31, v9")
    o(f"v_cmp_gt_u32 vcc, {CAP}, v8"); o("s_and_saveexec_b64 s[28:29], vcc")
    o("buffer_store_dwordx2 v[26:27], v9, s[20:23], 0 offen")
    o("s_andn2_b64 exec, s[28:29], exec"); o(f"s_cbranch_execz A_skip{i}")
    o("v_mov_b32 v6, 1024"); o("ds_add_rtn_u32 v8, v6, v7"); o("s_waitcnt lgkmcnt(0)")
    o("v_lshl_add_u32 v9, v8, 3, s33")
    o("buffer_store_dwordx2 v[26:27], v9, s[20:23], 0 offen")
    lab(f"A_skip{i}")
    o("s_mov_b64 exec, s[28:29]")
o("s_waitcnt lgkmcnt(0)"); o("s_barrier")
o(f"v_cmp_gt_u32 vcc, {NB}, v0"); o("s_and_saveexec_b64 s[28:29], vcc")
o("ds_read_b32 v5, v1"); o("s_waitcnt lgkmcnt(0)")
o(f"v_min_u32 v5, {CAP}, v5")
o(f"v_mul_u32_u24 v6, {GA*4}, v0"); o("s_lshl_b32 s32, s2, 2"); o(f"s_add_u32 s32, s32, {CNT}")
o("v_add_u32 v6, s32, v6")
o("buffer_store_dword v5, v6, s[20:23], 0 offen")
o("s_mov_b64 exec, s[28:29]")
o("v_cmp_eq_u32 vcc, 0, v0"); o("s_and_saveexec_b64 s[28:29], vcc")
o("v_mov_b32 v6, 1024"); o("ds_read_b32 v5, v6"); o("s_waitcnt lgkmcnt(0)")
o("s_lshl_b32 s32, s2, 2"); o(f"s_add_u32 s32, s32, {OVC}"); o("v_mov_b32 v6, s32")
o("buffer_store_dword v5, v6, s[20:23], 0 offen")
o("s_mov_b64 exec, s[28:29]")
o(f"v_cmp_gt_u32 vcc, {BN}, v0"); o("s_and_saveexec_b64 s[28:29], vcc")
o(f"s_mul_i32 s32, s2, {BN}"); o("v_add_u32 v5, s32, v0"); o("v_mul_u32_u24 v6, 6, v5")
for c in range(3): o(f"buffer_load_ushort v{12+c}, v6, s[24:27], 0 offen offset:{2*c}")
o("s_waitcnt vmcnt(0)")
for c in range(3): o(f"v_lshlrev_b32 v{12+c}, 16, v{12+c}")
o("v_mov_b32 v15, 0"); o("v_lshlrev_b32 v6, 4, v5"); o(f"v_add_u32 v6, {POS4}, v6")
o("buffer_store_dwordx4 v[12:15], v6, s[20:23], 0 offen")
o("s_mov_b64 exec, s[28:29]")
o("s_cmp_ge_u32 s2, 36"); o("s_cbranch_scc1 A_done")
o("v_cmp_gt_u32 vcc, 64, v0"); o("s_and_saveexec_b64 s[28:29], vcc"); o("s_cbranch_execz A_done")
o("s_load_dwordx2 s[36:37], s[0:1], 40"); o("s_load_dwordx2 s[38:39], s[0:1], 56"); o("s_waitcnt lgkmcnt(0)")
o("s_cmp_ge_u32 s2, 20"); o("s_cbranch_scc1 A_fh")
srd(40, 36, 145*128)
o("s_and_b32 s44, s2, 3"); o("s_lshr_b32 s45, s2, 2"); o("s_lshl_b32 s45, s45, 5"); o("s_add_u32 s45, s45, 64")
o("s_cmp_eq_u32 s45, 128"); o("s_cselect_b32 s45, 129, s45")
o("s_cmp_ge_u32 s2, 12"); o("s_cbranch_scc0 A_fgo"); o("s_sub_u32 s45, s45, 160"); o("s_branch A_fgo")
lab("A_fh")
srd(40, 38, 128*128)
o("s_sub_u32 s46, s2, 20"); o("s_lshr_b32 s44, s46, 2"); o("s_and_b32 s45, s46, 3"); o("s_lshl_b32 s45, s45, 5")
lab("A_fgo")
o("v_and_b32 v1, 15, v0"); o("v_lshrrev_b32 v2, 4, v0")
o("s_lshl_b32 s46, s45, 7"); o("s_lshl_b32 s47, s44, 5"); o("s_add_u32 s46, s46, s47")
o("v_lshlrev_b32 v5, 10, v2"); o("v_lshl_add_u32 v5, v1, 1, v5"); o("v_add_u32 v5, s46, v5")
for j in range(8): o(f"buffer_load_ushort v{10+j}, v5, s[40:43], 0 offen offset:{j*128}")
o("s_cmp_eq_u32 s45, 129"); o("s_cbranch_scc0 A_fpk")
o("v_cmp_eq_u32 vcc, 2, v2"); o("s_and_b64 exec, exec, vcc")
o("v_lshlrev_b32 v5, 1, v1"); o("v_add_u32 v5, s47, v5"); o("v_add_u32 v5, 0x4000, v5")
o("buffer_load_ushort v10, v5, s[40:43], 0 offen"); o("s_mov_b64 exec, -1")
lab("A_fpk")
o("s_waitcnt vmcnt(0)")
for q in range(4): o(f"v_lshl_or_b32 v{20+q}, v{11+2*q}, 16, v{10+2*q}")
o("s_lshl_b32 s46, s2, 10"); o(f"s_add_u32 s46, s46, {FRAG}"); o("v_lshl_add_u32 v5, v0, 4, s46")
o("buffer_store_dwordx4 v[20:23], v5, s[20:23], 0 offen")
lab("A_done"); o("s_endpgm")

P1, ACC, NC, FLG, LIST = 0, 13056, 23936, 24704, 24832
RS = 272
L += [f".globl {NAME}_kernel", ".p2align 8", f".type {NAME}_kernel,@function", f"{NAME}_kernel:"]
o(f"s_cmp_ge_u32 s2, {NB}"); o("s_cbranch_scc1 B_done")
o("s_load_dwordx2 s[4:5], s[0:1], 0")
o("s_load_dwordx2 s[6:7], s[0:1], 16")
o("s_load_dwordx4 s[8:11], s[0:1], 40")
o("s_load_dwordx4 s[12:15], s[0:1], 56")
o("s_load_dwordx2 s[16:17], s[0:1], 80")
o("s_load_dwordx2 s[18:19], s[0:1], 8")
o("s_waitcnt lgkmcnt(0)")
srd(20, 4, N*128); srd(24, 6, E*32); srd(28, 8, 145*128); srd(32, 10, 128); srd(36, 12, 128*128)
srd(40, 14, 1340000); srd(44, 16, WS_BYTES); srd(48, 18, N*6)
o("v_and_b32 v1, 15, v0")
o("v_bfe_u32 v2, v0, 4, 2")
o("v_lshrrev_b32 v3, 6, v0"); o("s_nop 0"); o("v_readfirstlane_b32 s3, v3")
o(f"s_mul_i32 s52, s2, {BN}")
o("v_cmp_gt_u32 s[54:55], 2, v2")
o("v_cmp_eq_u32 s[56:57], 2, v2")
o("v_cmp_gt_u32 s[94:95], 3, v2")
o("v_mov_b32 v4, 0")
for i in range(6):
    o(f"v_lshlrev_b32 v5, 2, v0"); o(f"v_add_u32 v5, {ACC + i*2048}, v5")
    o(f"v_cmp_gt_u32 vcc, {ACC+10880}, v5"); o("s_and_saveexec_b64 s[58:59], vcc"); o("ds_write_b32 v5, v4"); o("s_mov_b64 exec, s[58:59]")
o(f"v_mov_b32 v5, {FLG}"); o("ds_write_b32 v5, v4")
o("s_waitcnt lgkmcnt(0)"); o("s_barrier")
o(f"v_cmp_gt_u32 vcc, {GA}, v0"); o("s_and_saveexec_b64 s[58:59], vcc")
o("v_lshlrev_b32 v5, 2, v0"); o(f"v_add_u32 v5, {OVC}, v5"); o("buffer_load_dword v6, v5, s[44:47], 0 offen")
o("s_waitcnt vmcnt(0)"); o("v_cmp_ne_u32 vcc, 0, v6"); o("s_and_b64 exec, exec, vcc")
o(f"v_mov_b32 v5, {FLG}"); o("v_mov_b32 v6, 1"); o("ds_write_b32 v5, v6")
o("s_mov_b64 exec, s[58:59]")
def wfrag(srdb, dst, krow_of, ft, tmp="v5"):
    pass
def ldf(k, dst):
    o(f"buffer_load_dwordx4 v[{dst}:{dst+3}], v4, s[44:47], s53 offen") if k is None else None
def load_frag_k(k, dst):
    o(f"s_mov_b32 s53, {FRAG + k*1024}"); o(f"buffer_load_dwordx4 v[{dst}:{dst+3}], v4, s[44:47], s53 offen")
o("v_and_b32 v4, 63, v0"); o("v_lshlrev_b32 v4, 4, v4")
for k in range(12): load_frag_k(k, 64 + k*4)
for ft in range(4):
    o(f"v_lshlrev_b32 v5, 3, v2");
    for r in range(4): o(f"buffer_load_ushort v{112+ft*4+r}, v5, s[32:35], 0 offen offset:{ft*32 + 2*r}")
o("s_cmp_gt_u32 s3, 2"); o("s_cbranch_scc1 B_p1done")
for k in range(8): load_frag_k(12 + k, 24 + k*4)
o("s_lshl_b32 s60, s3, 4"); o("s_add_u32 s60, s60, s52"); o("v_add_u32 v6, s60, v1")
o("v_lshlrev_b32 v6, 7, v6"); o("v_lshl_add_u32 v6, v2, 4, v6")
o("buffer_load_dwordx4 v[56:59], v6, s[20:23], 0 offen"); o("buffer_load_dwordx4 v[60:63], v6, s[20:23], 0 offen offset:64")
o("s_waitcnt vmcnt(0)")
for ft in range(4):
    o(f"v_mfma_f32_16x16x32_bf16 v[{8+ft*4}:{11+ft*4}], v[{24+ft*4}:{27+ft*4}], v[56:59], 0")
    o(f"v_mfma_f32_16x16x32_bf16 v[{8+ft*4}:{11+ft*4}], v[{40+ft*4}:{43+ft*4}], v[60:63], v[{8+ft*4}:{11+ft*4}]")
o("s_nop 15")
o("s_lshl_b32 s60, s3, 4"); o("v_add_u32 v6, s60, v1"); o(f"v_mul_u32_u24 v6, {RS}, v6"); o("v_lshl_add_u32 v6, v2, 4, v6")
for ft in range(4): o(f"ds_write_b128 v6, v[{8+ft*4}:{11+ft*4}] offset:{P1 + ft*64}")
lab("B_p1done")
o("s_waitcnt vmcnt(0)")
for i in range(16): o(f"v_lshlrev_b32 v{112+i}, 16, v{112+i}")
o("s_waitcnt lgkmcnt(0)"); o("s_barrier")
o(f"v_mov_b32 v5, {FLG}"); o("ds_read_b32 v5, v5"); o("s_waitcnt lgkmcnt(0)"); o("v_readfirstlane_b32 s61, v5")
o("s_mov_b32 s62, 0")
lab("B_round")
o("s_cmp_eq_u32 s62, 0"); o("s_cbranch_scc0 B_src_ovf")
o(f"s_mul_i32 s63, s2, {GA*CAP*8}"); o("s_mov_b32 s64, 0"); o("s_branch B_src_done")
lab("B_src_ovf")
o("s_sub_u32 s65, s62, 1"); o("s_lshl_b32 s66, s65, 2"); o(f"s_add_u32 s66, s66, {OVC}")
o("v_mov_b32 v5, s66"); o("buffer_load_dword v5, v5, s[44:47], 0 offen"); o("s_waitcnt vmcnt(0)"); o("v_readfirstlane_b32 s64, v5")
o("s_cmp_eq_u32 s64, 0"); o("s_cbranch_scc1 B_next")
o(f"s_mul_i32 s63, s65, {CH*8}"); o(f"s_add_u32 s63, s63, {OVL}")
lab("B_src_done")
o("v_cmp_gt_u32 vcc, 64, v0"); o("s_and_saveexec_b64 s[58:59], vcc")
o("v_lshlrev_b32 v5, 2, v0"); o("v_mov_b32 v4, 0"); o(f"ds_write_b32 v5, v4 offset:{NC}"); o("s_mov_b64 exec, s[58:59]")
o("s_waitcnt lgkmcnt(0)"); o("s_barrier")
o(f"s_mul_i32 s60, s2, {GA*4}"); o(f"s_add_u32 s60, s60, {CNT}")
for i in range(16):
    o(f"v_add_u32 v5, {i*512}, v0")
    o("v_lshl_add_u32 v6, v5, 3, s63"); o(f"buffer_load_dwordx2 v[{8+2*i}:{9+2*i}], v6, s[44:47], 0 offen")
    o("v_lshrrev_b32 v6, 5, v5"); o("v_lshl_add_u32 v6, v6, 2, s60"); o(f"buffer_load_dword v{40+i}, v6, s[44:47], 0 offen")
o("s_waitcnt vmcnt(0)")
o("s_mov_b32 s67, 52429"); o("s_movk_i32 s98, 8000"); o("s_movk_i32 s99, 2560"); o("v_mov_b32 v56, 252"); o("v_mov_b32 v57, 1")
for i in range(16):
    o(f"v_add_u32 v5, {i*512}, v0")
    o("s_cmp_eq_u32 s62, 0"); o(f"s_cbranch_scc0 B_v{i}")
    o("v_and_b32 v6, 31, v5"); o(f"v_cmp_lt_u32 vcc, v6, v{40+i}")
    o(f"v_cmp_gt_u32 s[58:59], s98, v5"); o(f"s_branch B_w{i}")
    lab(f"B_v{i}")
    o("v_cmp_gt_u32 vcc, s64, v5"); o(f"v_cmp_gt_u32 s[58:59], s99, v5")
    lab(f"B_w{i}")
    o("s_and_b64 vcc, vcc, s[58:59]")
    o(f"v_lshrrev_b32 v6, 16, v{9+2*i}"); o("v_mul_u32_u24 v7, s67, v6"); o("v_lshrrev_b32 v7, 21, v7")
    o("v_cmp_eq_u32 s[58:59], s2, v7"); o("s_and_b64 vcc, vcc, s[58:59]")
    o("v_subrev_u32 v6, s52, v6"); o("v_lshlrev_b32 v6, 2, v6"); o("s_nop 0")
    o(f"v_cndmask_b32 v{40+i}, v56, v6, vcc")
    o(f"ds_add_u32 v{40+i}, v57 offset:{NC}")
o("s_waitcnt lgkmcnt(0)"); o("s_barrier")
o("s_cmp_lg_u32 s3, 0"); o("s_cbranch_scc1 B_pfx")
o("v_lshlrev_b32 v5, 2, v0"); o(f"ds_read_b32 v6, v5 offset:{NC}"); o("s_waitcnt lgkmcnt(0)")
o("v_add_u32 v6, 15, v6"); o("v_and_b32 v6, 0xfffffff0, v6"); o("v_mov_b32 v7, v6")
for sh in (1, 2, 4, 8):
    o("s_nop 1"); o(f"v_add_u32_dpp v7, v7, v7 row_shr:{sh} row_mask:0xf bank_mask:0xf bound_ctrl:0")
o("s_nop 1"); o("v_add_u32_dpp v7, v7, v7 row_bcast:15 row_mask:0xa bank_mask:0xf")
o("s_nop 1"); o("v_add_u32_dpp v7, v7, v7 row_bcast:31 row_mask:0xc bank_mask:0xf")
o("v_sub_u32 v7, v7, v6")
o(f"ds_write_b32 v5, v7 offset:{NC+256}"); o(f"ds_write_b32 v5, v7 offset:{NC+512}")
lab("B_pfx")
o("s_waitcnt lgkmcnt(0)"); o("s_barrier")
for i in range(16):
    o(f"ds_add_rtn_u32 v6, v{40+i}, v57 offset:{NC+512}"); o("s_waitcnt lgkmcnt(0)")
    o("v_lshlrev_b32 v6, 3, v6"); o(f"ds_write_b64 v6, v[{8+2*i}:{9+2*i}] offset:{LIST}")
o("s_waitcnt lgkmcnt(0)"); o("s_barrier")
o("s_mov_b32 s68, s3")
lab("B_node")
o(f"s_cmp_ge_u32 s68, {BN}"); o("s_cbranch_scc1 B_nodes_done")
o("s_lshl_b32 s60, s68, 2"); o("v_mov_b32 v5, s60")
o(f"ds_read_b32 v6, v5 offset:{NC}"); o(f"ds_read_b32 v7, v5 offset:{NC+256}")
o(f"s_mul_i32 s60, s68, {RS}"); o("v_lshl_add_u32 v5, v2, 4, s60")
for ft in range(4): o(f"ds_read_b128 v[{128+ft*4}:{131+ft*4}], v5 offset:{P1+ft*64}")
o("s_add_u32 s60, s52, s68"); o("s_lshl_b32 s60, s60, 4"); o(f"s_add_u32 s60, s60, {POS4}"); o("v_mov_b32 v5, s60")
o("buffer_load_dwordx4 v[144:147], v5, s[44:47], 0 offen")
o("s_waitcnt lgkmcnt(0)"); o("v_readfirstlane_b32 s69, v6"); o("v_readfirstlane_b32 s86, v7")
for i in range(19): o(f"v_mov_b32 v{148+i}, 0")
def issue(B, M):
    o("v_add_u32 v5, s87, v1"); o(f"v_cmp_gt_u32 s[{M}:{M+1}], s69, v5")
    o("v_add_u32 v5, s86, v5"); o("v_lshlrev_b32 v5, 3, v5"); o(f"ds_read_b64 v[6:7], v5 offset:{LIST}"); o("s_waitcnt lgkmcnt(0)")
    o("v_and_b32 v8, 0xffff, v7")
    o("v_and_b32 v9, 1, v2"); o("v_lshlrev_b32 v9, 4, v9"); o("v_lshl_add_u32 v9, v6, 5, v9")
    o(f"buffer_load_dwordx4 v[{B}:{B+3}], v9, s[24:27], 0 offen")
    o("v_lshlrev_b32 v9, 7, v8"); o("v_lshl_add_u32 v9, v2, 4, v9")
    o(f"buffer_load_dwordx4 v[{B+4}:{B+7}], v9, s[20:23], 0 offen"); o(f"buffer_load_dwordx4 v[{B+8}:{B+11}], v9, s[20:23], 0 offen offset:64")
    o("v_lshlrev_b32 v9, 4, v8"); o(f"v_add_u32 v9, {POS4}, v9"); o(f"buffer_load_dwordx4 v[{B+12}:{B+15}], v9, s[44:47], 0 offen")
def compute(B, M):
    o("v_mov_b32 v10, 0xc6ea6000")
    for i in range(16): o(f"v_cndmask_b32 v{32+i}, v10, v{128+i}, s[{M}:{M+1}]")
    for c in range(3): o(f"v_sub_f32 v{B+12+c}, v{144+c}, v{B+12+c}"); o(f"v_cndmask_b32 v{B+12+c}, 0, v{B+12+c}, s[{M}:{M+1}]")
    o(f"v_mul_f32 v10, v{B+12}, v{B+12}"); o(f"v_fmac_f32 v10, v{B+13}, v{B+13}"); o(f"v_fmac_f32 v10, v{B+14}, v{B+14}")
    o("v_cvt_pk_bf16_f32 v10, v10, 0")
    o(f"v_cndmask_b32 v{B}, v10, v{B}, s[54:55]")
    for r in range(1, 4): o(f"v_cndmask_b32 v{B+r}, 0, v{B+r}, s[54:55]")
    o(f"v_cndmask_b32 v{B}, 0, v{B}, s[94:95]"); o("s_nop 1")
    for ft in range(4):
        D = f"v[{32+ft*4}:{35+ft*4}]"
        o(f"v_mfma_f32_16x16x32_bf16 {D}, v[{64+ft*4}:{67+ft*4}], v[{B+4}:{B+7}], {D}")
        o(f"v_mfma_f32_16x16x32_bf16 {D}, v[{80+ft*4}:{83+ft*4}], v[{B+8}:{B+11}], {D}")
        o(f"v_mfma_f32_16x16x32_bf16 {D}, v[{96+ft*4}:{99+ft*4}], v[{B}:{B+3}], {D}")
    o("s_nop 7"); o("v_mov_b32 v11, 0")
    for i in range(16): o(f"v_mul_f32 v{48+i}, 0xbfb8aa3b, v{32+i}")
    for i in range(16): o(f"v_exp_f32 v{48+i}, v{48+i}")
    for i in range(16): o(f"v_add_f32 v{48+i}, 1.0, v{48+i}")
    for i in range(16): o(f"v_rcp_f32 v{48+i}, v{48+i}")
    for i in range(16): o(f"v_mul_f32 v{48+i}, v{32+i}, v{48+i}")
    for i in range(16):
        o(f"v_add_f32 v{148+i}, v{148+i}, v{48+i}"); o(f"v_fmac_f32 v11, v{48+i}, v{112+i}")
    for c in range(3): o(f"v_fmac_f32 v{164+c}, v{B+12+c}, v11")
o("s_mov_b32 s87, 0")
o("s_cmp_ge_u32 s87, s69"); o("s_cbranch_scc1 B_tiles_done")
issue(168, 88)
lab("B_tile")
o("s_add_u32 s87, s87, 16"); o("s_cmp_ge_u32 s87, s69"); o("s_cbranch_scc1 B_lastA")
issue(184, 90)
o("s_waitcnt vmcnt(4)"); compute(168, 88)
o("s_add_u32 s87, s87, 16"); o("s_cmp_ge_u32 s87, s69"); o("s_cbranch_scc1 B_lastB")
issue(168, 88)
o("s_waitcnt vmcnt(4)"); compute(184, 90)
o("s_branch B_tile")
lab("B_lastA")
o("s_waitcnt vmcnt(0)"); compute(168, 88); o("s_branch B_tiles_done")
lab("B_lastB")
o("s_waitcnt vmcnt(0)"); compute(184, 90)
lab("B_tiles_done")
for sh in (1, 2, 4, 8):
    for i in range(19):
        o(f"v_add_f32_dpp v{148+i}, v{148+i}, v{148+i} row_shr:{sh} row_mask:0xf bank_mask:0xf bound_ctrl:0")
    o("s_nop 1")
o("v_cmp_eq_u32 vcc, 15, v1"); o("s_and_saveexec_b64 s[58:59], vcc")
o(f"s_mul_i32 s60, s68, {RS}"); o("v_lshl_add_u32 v5, v2, 4, s60")
for i in range(16): o(f"ds_add_f32 v5, v{148+i} offset:{ACC + (i//4)*64 + (i%4)*4}")
o("v_mov_b32 v5, s60")
for c in range(3): o(f"ds_add_f32 v5, v{164+c} offset:{ACC + 256 + 4*c}")
o("s_mov_b64 exec, s[58:59]")
o("s_add_u32 s68, s68, 8"); o("s_branch B_node")
lab("B_nodes_done")
o("s_waitcnt lgkmcnt(0)"); o("s_barrier")
lab("B_next")
o("s_cmp_eq_u32 s61, 0"); o("s_cbranch_scc1 B_final")
o("s_add_u32 s62, s62, 1"); o(f"s_cmp_le_u32 s62, {GA}"); o("s_cbranch_scc1 B_round")
lab("B_final")
if DEBUG:
    o("s_cmp_lg_u32 s2, 0"); o("s_cbranch_scc1 B_nodbg")
    o("s_load_dwordx2 s[92:93], s[0:1], 72"); o("s_waitcnt lgkmcnt(0)")
    srd(96, 92, 256)
    o("v_cmp_gt_u32 vcc, 16, v0"); o("s_and_saveexec_b64 s[58:59], vcc")
    o("v_lshlrev_b32 v5, 2, v0"); o(f"ds_read_b32 v6, v5 offset:{DBGOFF}"); o("s_waitcnt lgkmcnt(0)")
    o("buffer_store_dword v6, v5, s[96:99], 0 offen"); o("s_mov_b64 exec, s[58:59]")
    lab("B_nodbg")
o("s_cmp_gt_u32 s3, 2"); o("s_cbranch_scc1 B_pos")
o("s_lshl_b32 s60, s3, 4"); o("v_add_u32 v6, s60, v1")
o("v_add_u32 v7, s52, v6"); o("v_lshlrev_b32 v7, 7, v7")
o("v_lshl_add_u32 v8, v2, 4, v7")
o("buffer_load_dwordx4 v[16:19], v8, s[20:23], 0 offen"); o("buffer_load_dwordx4 v[20:23], v8, s[20:23], 0 offen offset:64")
o(f"v_mul_u32_u24 v9, {RS}, v6"); o("v_lshl_add_u32 v9, v2, 5, v9")
for q in range(4): o(f"ds_read_b128 v[{32+q*4}:{35+q*4}], v9 offset:{ACC + (q//2)*128 + (q%2)*16}")
o("s_waitcnt lgkmcnt(0)")
for q in range(8): o(f"v_cvt_pk_bf16_f32 v{24+q}, v{32+2*q}, v{33+2*q}")
for ft in range(4):
    o("v_and_b32 v4, 63, v0"); o("v_lshlrev_b32 v4, 4, v4")
    for ks in range(4): load_frag_k(20 + ft*4 + ks, 32 + ks*4)
    o("s_waitcnt vmcnt(0)")
    D = f"v[{48}:{51}]"
    o(f"v_mfma_f32_16x16x32_bf16 {D}, v[32:35], v[16:19], 0")
    o(f"v_mfma_f32_16x16x32_bf16 {D}, v[36:39], v[20:23], {D}")
    o(f"v_mfma_f32_16x16x32_bf16 {D}, v[40:43], v[24:27], {D}")
    o(f"v_mfma_f32_16x16x32_bf16 {D}, v[44:47], v[28:31], {D}")
    o(f"v_lshl_add_u32 v10, v2, 3, v7"); o(f"buffer_load_dwordx2 v[52:53], v10, s[20:23], 0 offen offset:{ft*32}")
    o("s_nop 7"); o("s_waitcnt vmcnt(0)")
    for r in range(4):
        o(f"v_mul_f32 v54, 0xbfb8aa3b, v{48+r}"); o("v_exp_f32 v54, v54"); o("s_nop 0"); o("v_add_f32 v54, 1.0, v54")
        o("v_rcp_f32 v54, v54"); o("s_nop 0"); o(f"v_mul_f32 v54, v{48+r}, v54")
        o("v_cvt_pk_bf16_f32 v54, v54, 0"); o("v_lshlrev_b32 v54, 16, v54")
        o(f"v_lshlrev_b32 v55, 16, v{52+r//2}" if r % 2 == 0 else f"v_and_b32 v55, 0xffff0000, v{52+r//2}")
        o(f"v_add_f32 v{48+r}, v54, v55")
    o("v_cvt_pk_bf16_f32 v48, v48, v49"); o("v_cvt_pk_bf16_f32 v49, v50, v51")
    o(f"v_cmp_gt_u32 vcc, {BN}, v6"); o("s_and_saveexec_b64 s[58:59], vcc")
    o(f"buffer_store_dwordx2 v[48:49], v10, s[40:43], 0 offen offset:{ft*32}")
    o("s_mov_b64 exec, s[58:59]"); o("s_nop 2")
lab("B_pos")
o(f"v_cmp_gt_u32 vcc, {BN}, v0"); o("s_and_saveexec_b64 s[58:59], vcc")
o("v_add_u32 v5, s52, v0"); o("v_mul_u32_u24 v6, 6, v5"); o(f"v_mul_u32_u24 v7, {RS}, v0")
for c in range(3):
    o(f"buffer_load_ushort v{8+c}, v6, s[48:51], 0 offen offset:{2*c}"); o(f"ds_read_b32 v{12+c}, v7 offset:{ACC+256+4*c}")
o("s_waitcnt vmcnt(0) lgkmcnt(0)")
for c in range(3):
    o(f"v_lshlrev_b32 v{8+c}, 16, v{8+c}"); o(f"v_add_f32 v{8+c}, v{8+c}, v{12+c}"); o(f"v_cvt_pk_bf16_f32 v{8+c}, v{8+c}, 0")
    o(f"v_add_u32 v15, {1280000+2*c}, v6"); o(f"buffer_store_short v{8+c}, v15, s[40:43], 0 offen")
lab("B_done"); o("s_endpgm")

def kd(name, vg):
    return ['.section .rodata,"a"', ".p2align 6", f".amdhsa_kernel {name}", f"  .amdhsa_next_free_vgpr {vg}",
      "  .amdhsa_next_free_sgpr 102", f"  .amdhsa_accum_offset {vg}", "  .amdhsa_group_segment_fixed_size 0",
      "  .amdhsa_kernarg_size 88", "  .amdhsa_user_sgpr_count 2", "  .amdhsa_user_sgpr_kernarg_segment_ptr 1",
      "  .amdhsa_system_sgpr_workgroup_id_x 1", ".end_amdhsa_kernel"]
out += L + kd("egnn_bin_kernel", 32) + kd(NAME + "_kernel", 208)
open(sys.argv[2], "w").write("\n".join(out) + "\n")
```

```python
import sys
NAME = "gather_scatter__cheap_equivariant_egnn__graph"
N, E = 10000, 640000
NB, GA, CAP, BN = 250, 250, 32, 40
CH = E // GA
ENT, CNT, POS4, OVC, OVL = 0, 0x1000000, 0x1100000, 0x1200000, 0x1300000
WS_BYTES = 268435456
FRAG = 0x1800000
L = []
import os
DEBUG = int(os.environ.get('DBG','0'))
DBGOFF = int(os.environ.get('DBGOFF','0'))
def o(s): L.append("    " + s)
def lab(s): L.append(s + ":")

hdr = open(sys.argv[1]).read().split("\n")
head = [l for l in hdr if l.startswith(";") and "@launch" not in l and "Override" not in l and "grid=ceil" not in l]
out = head + [
 f"; @launch kernel=egnn_bin_kernel grid=({GA},1,1) block=(512,1,1) lds=1280",
 f"; @launch kernel={NAME}_kernel grid=({NB},1,1) block=(512,1,1) lds=98304",
 '.amdgcn_target "amdgcn-amd-amdhsa--gfx950"', ".text"]

def srd(d, plo, nbytes):
    o(f"s_mov_b32 s{d}, s{plo}"); o(f"s_and_b32 s{d+1}, s{plo+1}, 0xffff")
    o(f"s_mov_b32 s{d+2}, {nbytes}"); o(f"s_mov_b32 s{d+3}, 0x00020000")

L += [".globl egnn_bin_kernel", ".p2align 8", ".type egnn_bin_kernel,@function", "egnn_bin_kernel:"]
o(f"s_cmp_ge_u32 s2, {GA}"); o("s_cbranch_scc1 A_done")
o("s_load_dwordx2 s[4:5], s[0:1], 8")
o("s_load_dwordx4 s[8:11], s[0:1], 24")
o("s_load_dwordx2 s[6:7], s[0:1], 80")
o("s_waitcnt lgkmcnt(0)")
srd(12, 8, E*4); srd(16, 10, E*4); srd(20, 6, WS_BYTES); srd(24, 4, N*6)
o(f"s_mul_i32 s3, s2, {CH}")
o("v_lshlrev_b32 v1, 2, v0")
o("v_mov_b32 v2, 0")
o("v_cmp_gt_u32 vcc, 0x140, v0"); o("s_and_saveexec_b64 s[28:29], vcc")
o("ds_write_b32 v1, v2")
o("s_mov_b64 exec, s[28:29]")
o("v_add_u32 v3, s3, v0")
o("v_lshlrev_b32 v4, 2, v3")
for i in range(5):
    o(f"s_movk_i32 s34, {i*2048}")
    o(f"buffer_load_dword v{10+i}, v4, s[16:19], s34 offen")
    o(f"buffer_load_dword v{18+i}, v4, s[12:15], s34 offen")
o("s_waitcnt lgkmcnt(0)"); o("s_barrier")
o("s_mov_b32 s30, 52429"); o(f"s_mul_i32 s31, s2, {CAP*8}")
o(f"s_mul_i32 s33, s2, {CH*8}"); o(f"s_add_u32 s33, s33, {OVL}")
for i in range(5):
    o(f"s_waitcnt vmcnt({8-2*i})")
    o(f"v_mul_u32_u24 v5, s30, v{10+i}"); o("v_lshrrev_b32 v5, 21, v5")
    o("v_lshlrev_b32 v6, 2, v5"); o("v_mov_b32 v7, 1")
    o("ds_add_rtn_u32 v8, v6, v7")
    o(f"v_lshlrev_b32 v9, 16, v{10+i}"); o(f"v_or_b32 v27, v9, v{18+i}")
    o(f"v_add_u32 v26, {i*512}, v3")
    o("s_waitcnt lgkmcnt(0)")
    o(f"v_mul_u32_u24 v9, {GA*CAP*8}, v5"); o("v_lshl_add_u32 v9, v8, 3, v9"); o("v_add_u32 v9, s31, v9")
    o(f"v_cmp_gt_u32 vcc, {CAP}, v8"); o("s_and_saveexec_b64 s[28:29], vcc")
    o("buffer_store_dwordx2 v[26:27], v9, s[20:23], 0 offen")
    o("s_andn2_b64 exec, s[28:29], exec"); o(f"s_cbranch_execz A_skip{i}")
    o("v_mov_b32 v6, 1024"); o("ds_add_rtn_u32 v8, v6, v7"); o("s_waitcnt lgkmcnt(0)")
    o("v_lshl_add_u32 v9, v8, 3, s33")
    o("buffer_store_dwordx2 v[26:27], v9, s[20:23], 0 offen")
    lab(f"A_skip{i}")
    o("s_mov_b64 exec, s[28:29]")
o("s_waitcnt lgkmcnt(0)"); o("s_barrier")
o(f"v_cmp_gt_u32 vcc, {NB}, v0"); o("s_and_saveexec_b64 s[28:29], vcc")
o("ds_read_b32 v5, v1"); o("s_waitcnt lgkmcnt(0)")
o(f"v_min_u32 v5, {CAP}, v5")
o(f"v_mul_u32_u24 v6, {GA*4}, v0"); o("s_lshl_b32 s32, s2, 2"); o(f"s_add_u32 s32, s32, {CNT}")
o("v_add_u32 v6, s32, v6")
o("buffer_store_dword v5, v6, s[20:23], 0 offen")
o("s_mov_b64 exec, s[28:29]")
o("v_cmp_eq_u32 vcc, 0, v0"); o("s_and_saveexec_b64 s[28:29], vcc")
o("v_mov_b32 v6, 1024"); o("ds_read_b32 v5, v6"); o("s_waitcnt lgkmcnt(0)")
o("s_lshl_b32 s32, s2, 2"); o(f"s_add_u32 s32, s32, {OVC}"); o("v_mov_b32 v6, s32")
o("buffer_store_dword v5, v6, s[20:23], 0 offen")
o("s_mov_b64 exec, s[28:29]")
o(f"v_cmp_gt_u32 vcc, {BN}, v0"); o("s_and_saveexec_b64 s[28:29], vcc")
o(f"s_mul_i32 s32, s2, {BN}"); o("v_add_u32 v5, s32, v0"); o("v_mul_u32_u24 v6, 6, v5")
for c in range(3): o(f"buffer_load_ushort v{12+c}, v6, s[24:27], 0 offen offset:{2*c}")
o("s_waitcnt vmcnt(0)")
for c in range(3): o(f"v_lshlrev_b32 v{12+c}, 16, v{12+c}")
o("v_mov_b32 v15, 0"); o("v_lshlrev_b32 v6, 4, v5"); o(f"v_add_u32 v6, {POS4}, v6")
o("buffer_store_dwordx4 v[12:15], v6, s[20:23], 0 offen")
o("s_mov_b64 exec, s[28:29]")
o("s_cmp_ge_u32 s2, 36"); o("s_cbranch_scc1 A_done")
o("v_cmp_gt_u32 vcc, 64, v0"); o("s_and_saveexec_b64 s[28:29], vcc"); o("s_cbranch_execz A_done")
o("s_load_dwordx2 s[36:37], s[0:1], 40"); o("s_load_dwordx2 s[38:39], s[0:1], 56"); o("s_waitcnt lgkmcnt(0)")
o("s_cmp_ge_u32 s2, 20"); o("s_cbranch_scc1 A_fh")
srd(40, 36, 145*128)
o("s_and_b32 s44, s2, 3"); o("s_lshr_b32 s45, s2, 2"); o("s_lshl_b32 s45, s45, 5"); o("s_add_u32 s45, s45, 64")
o("s_cmp_eq_u32 s45, 128"); o("s_cselect_b32 s45, 129, s45")
o("s_cmp_ge_u32 s2, 12"); o("s_cbranch_scc0 A_fgo"); o("s_sub_u32 s45, s45, 160"); o("s_branch A_fgo")
lab("A_fh")
srd(40, 38, 128*128)
o("s_sub_u32 s46, s2, 20"); o("s_lshr_b32 s44, s46, 2"); o("s_and_b32 s45, s46, 3"); o("s_lshl_b32 s45, s45, 5")
lab("A_fgo")
o("v_and_b32 v1, 15, v0"); o("v_lshrrev_b32 v2, 4, v0")
o("s_lshl_b32 s46, s45, 7"); o("s_lshl_b32 s47, s44, 5"); o("s_add_u32 s46, s46, s47")
o("v_lshlrev_b32 v5, 10, v2"); o("v_lshl_add_u32 v5, v1, 1, v5"); o("v_add_u32 v5, s46, v5")
for j in range(8): o(f"buffer_load_ushort v{10+j}, v5, s[40:43], 0 offen offset:{j*128}")
o("s_cmp_eq_u32 s45, 129"); o("s_cbranch_scc0 A_fpk")
o("v_cmp_eq_u32 vcc, 2, v2"); o("s_and_b64 exec, exec, vcc")
o("v_lshlrev_b32 v5, 1, v1"); o("v_add_u32 v5, s47, v5"); o("v_add_u32 v5, 0x4000, v5")
o("buffer_load_ushort v10, v5, s[40:43], 0 offen"); o("s_mov_b64 exec, -1")
lab("A_fpk")
o("s_waitcnt vmcnt(0)")
for q in range(4): o(f"v_lshl_or_b32 v{20+q}, v{11+2*q}, 16, v{10+2*q}")
o("s_lshl_b32 s46, s2, 10"); o(f"s_add_u32 s46, s46, {FRAG}"); o("v_lshl_add_u32 v5, v0, 4, s46")
o("buffer_store_dwordx4 v[20:23], v5, s[20:23], 0 offen")
lab("A_done"); o("s_endpgm")

P1, ACC, NC, FLG, LIST = 0, 13056, 23936, 24704, 24832
RS = 272
L += [f".globl {NAME}_kernel", ".p2align 8", f".type {NAME}_kernel,@function", f"{NAME}_kernel:"]
o(f"s_cmp_ge_u32 s2, {NB}"); o("s_cbranch_scc1 B_done")
o("s_load_dwordx2 s[4:5], s[0:1], 0")
o("s_load_dwordx2 s[6:7], s[0:1], 16")
o("s_load_dwordx4 s[8:11], s[0:1], 40")
o("s_load_dwordx4 s[12:15], s[0:1], 56")
o("s_load_dwordx2 s[16:17], s[0:1], 80")
o("s_load_dwordx2 s[18:19], s[0:1], 8")
o("s_waitcnt lgkmcnt(0)")
srd(20, 4, N*128); srd(24, 6, E*32); srd(28, 8, 145*128); srd(32, 10, 128); srd(36, 12, 128*128)
srd(40, 14, 1340000); srd(44, 16, WS_BYTES); srd(48, 18, N*6)
o("s_memtime s[100:101]") if DEBUG==2 else None; o("s_waitcnt lgkmcnt(0)") if DEBUG==2 else None; o("v_mov_b32 v240, s100") if DEBUG==2 else None
o("v_and_b32 v1, 15, v0")
o("v_bfe_u32 v2, v0, 4, 2")
o("v_lshrrev_b32 v3, 6, v0"); o("s_nop 0"); o("v_readfirstlane_b32 s3, v3")
o(f"s_mul_i32 s52, s2, {BN}")
o("v_cmp_gt_u32 s[54:55], 2, v2")
o("v_cmp_eq_u32 s[56:57], 2, v2")
o("v_cmp_gt_u32 s[94:95], 3, v2")
o("v_mov_b32 v4, 0")
for i in range(6):
    o(f"v_lshlrev_b32 v5, 2, v0"); o(f"v_add_u32 v5, {ACC + i*2048}, v5")
    o(f"v_cmp_gt_u32 vcc, {ACC+10880}, v5"); o("s_and_saveexec_b64 s[58:59], vcc"); o("ds_write_b32 v5, v4"); o("s_mov_b64 exec, s[58:59]")
o(f"v_mov_b32 v5, {FLG}"); o("ds_write_b32 v5, v4")
o("s_waitcnt lgkmcnt(0)"); o("s_barrier")
o(f"v_cmp_gt_u32 vcc, {GA}, v0"); o("s_and_saveexec_b64 s[58:59], vcc")
o("v_lshlrev_b32 v5, 2, v0"); o(f"v_add_u32 v5, {OVC}, v5"); o("buffer_load_dword v6, v5, s[44:47], 0 offen")
o("s_waitcnt vmcnt(0)"); o("v_cmp_ne_u32 vcc, 0, v6"); o("s_and_b64 exec, exec, vcc")
o(f"v_mov_b32 v5, {FLG}"); o("v_mov_b32 v6, 1"); o("ds_write_b32 v5, v6")
o("s_mov_b64 exec, s[58:59]")
def wfrag(srdb, dst, krow_of, ft, tmp="v5"):
    pass
def ldf(k, dst):
    o(f"buffer_load_dwordx4 v[{dst}:{dst+3}], v4, s[44:47], s53 offen") if k is None else None
def load_frag_k(k, dst):
    o(f"s_mov_b32 s53, {FRAG + k*1024}"); o(f"buffer_load_dwordx4 v[{dst}:{dst+3}], v4, s[44:47], s53 offen")
o("v_and_b32 v4, 63, v0"); o("v_lshlrev_b32 v4, 4, v4")
for k in range(12): load_frag_k(k, 64 + k*4)
for ft in range(4):
    o(f"v_lshlrev_b32 v5, 3, v2");
    for r in range(4): o(f"buffer_load_ushort v{112+ft*4+r}, v5, s[32:35], 0 offen offset:{ft*32 + 2*r}")
o("s_cmp_gt_u32 s3, 2"); o("s_cbranch_scc1 B_p1done")
for k in range(8): load_frag_k(12 + k, 24 + k*4)
o("s_lshl_b32 s60, s3, 4"); o("s_add_u32 s60, s60, s52"); o("v_add_u32 v6, s60, v1")
o("v_lshlrev_b32 v6, 7, v6"); o("v_lshl_add_u32 v6, v2, 4, v6")
o("buffer_load_dwordx4 v[56:59], v6, s[20:23], 0 offen"); o("buffer_load_dwordx4 v[60:63], v6, s[20:23], 0 offen offset:64")
o("s_waitcnt vmcnt(0)")
for ft in range(4):
    o(f"v_mfma_f32_16x16x32_bf16 v[{8+ft*4}:{11+ft*4}], v[{24+ft*4}:{27+ft*4}], v[56:59], 0")
    o(f"v_mfma_f32_16x16x32_bf16 v[{8+ft*4}:{11+ft*4}], v[{40+ft*4}:{43+ft*4}], v[60:63], v[{8+ft*4}:{11+ft*4}]")
o("s_nop 15")
o("s_lshl_b32 s60, s3, 4"); o("v_add_u32 v6, s60, v1"); o(f"v_mul_u32_u24 v6, {RS}, v6"); o("v_lshl_add_u32 v6, v2, 4, v6")
for ft in range(4): o(f"ds_write_b128 v6, v[{8+ft*4}:{11+ft*4}] offset:{P1 + ft*64}")
lab("B_p1done")
o("s_waitcnt vmcnt(0)")
for i in range(16): o(f"v_lshlrev_b32 v{112+i}, 16, v{112+i}")
o("s_waitcnt lgkmcnt(0)"); o("s_barrier")
o(f"v_mov_b32 v5, {FLG}"); o("ds_read_b32 v5, v5"); o("s_waitcnt lgkmcnt(0)"); o("v_readfirstlane_b32 s61, v5")
o("s_memtime s[100:101]") if DEBUG==2 else None; o("s_waitcnt lgkmcnt(0)") if DEBUG==2 else None; o("v_mov_b32 v241, s100") if DEBUG==2 else None
o("s_mov_b32 s62, 0")
lab("B_round")
o("s_cmp_eq_u32 s62, 0"); o("s_cbranch_scc0 B_src_ovf")
o(f"s_mul_i32 s63, s2, {GA*CAP*8}"); o("s_mov_b32 s64, 0"); o("s_branch B_src_done")
lab("B_src_ovf")
o("s_sub_u32 s65, s62, 1"); o("s_lshl_b32 s66, s65, 2"); o(f"s_add_u32 s66, s66, {OVC}")
o("v_mov_b32 v5, s66"); o("buffer_load_dword v5, v5, s[44:47], 0 offen"); o("s_waitcnt vmcnt(0)"); o("v_readfirstlane_b32 s64, v5")
o("s_cmp_eq_u32 s64, 0"); o("s_cbranch_scc1 B_next")
o(f"s_mul_i32 s63, s65, {CH*8}"); o(f"s_add_u32 s63, s63, {OVL}")
lab("B_src_done")
o("v_cmp_gt_u32 vcc, 64, v0"); o("s_and_saveexec_b64 s[58:59], vcc")
o("v_lshlrev_b32 v5, 2, v0"); o("v_mov_b32 v4, 0"); o(f"ds_write_b32 v5, v4 offset:{NC}"); o("s_mov_b64 exec, s[58:59]")
o("s_waitcnt lgkmcnt(0)"); o("s_barrier")
o(f"s_mul_i32 s60, s2, {GA*4}"); o(f"s_add_u32 s60, s60, {CNT}")
for i in range(16):
    o(f"v_add_u32 v5, {i*512}, v0")
    o("v_lshl_add_u32 v6, v5, 3, s63"); o(f"buffer_load_dwordx2 v[{8+2*i}:{9+2*i}], v6, s[44:47], 0 offen")
    o("v_lshrrev_b32 v6, 5, v5"); o("v_lshl_add_u32 v6, v6, 2, s60"); o(f"buffer_load_dword v{40+i}, v6, s[44:47], 0 offen")
o("s_waitcnt vmcnt(0)")
o("s_mov_b32 s67, 52429"); o("s_movk_i32 s98, 8000"); o("s_movk_i32 s99, 2560"); o("v_mov_b32 v56, 252"); o("v_mov_b32 v57, 1")
for i in range(16):
    o(f"v_add_u32 v5, {i*512}, v0")
    o("s_cmp_eq_u32 s62, 0"); o(f"s_cbranch_scc0 B_v{i}")
    o("v_and_b32 v6, 31, v5"); o(f"v_cmp_lt_u32 vcc, v6, v{40+i}")
    o(f"v_cmp_gt_u32 s[58:59], s98, v5"); o(f"s_branch B_w{i}")
    lab(f"B_v{i}")
    o("v_cmp_gt_u32 vcc, s64, v5"); o(f"v_cmp_gt_u32 s[58:59], s99, v5")
    lab(f"B_w{i}")
    o("s_and_b64 vcc, vcc, s[58:59]")
    o(f"v_lshrrev_b32 v6, 16, v{9+2*i}"); o("v_mul_u32_u24 v7, s67, v6"); o("v_lshrrev_b32 v7, 21, v7")
    o("v_cmp_eq_u32 s[58:59], s2, v7"); o("s_and_b64 vcc, vcc, s[58:59]")
    o("v_subrev_u32 v6, s52, v6"); o("v_lshlrev_b32 v6, 2, v6"); o("s_nop 0")
    o(f"v_cndmask_b32 v{40+i}, v56, v6, vcc")
    o(f"ds_add_u32 v{40+i}, v57 offset:{NC}")
o("s_waitcnt lgkmcnt(0)"); o("s_barrier")
o("s_cmp_lg_u32 s3, 0"); o("s_cbranch_scc1 B_pfx")
o("v_lshlrev_b32 v5, 2, v0"); o(f"ds_read_b32 v6, v5 offset:{NC}"); o("s_waitcnt lgkmcnt(0)")
o("v_add_u32 v6, 15, v6"); o("v_and_b32 v6, 0xfffffff0, v6"); o("v_mov_b32 v7, v6")
for sh in (1, 2, 4, 8):
    o("s_nop 1"); o(f"v_add_u32_dpp v7, v7, v7 row_shr:{sh} row_mask:0xf bank_mask:0xf bound_ctrl:0")
o("s_nop 1"); o("v_add_u32_dpp v7, v7, v7 row_bcast:15 row_mask:0xa bank_mask:0xf")
o("s_nop 1"); o("v_add_u32_dpp v7, v7, v7 row_bcast:31 row_mask:0xc bank_mask:0xf")
o("v_sub_u32 v7, v7, v6")
o(f"ds_write_b32 v5, v7 offset:{NC+256}"); o(f"ds_write_b32 v5, v7 offset:{NC+512}")
lab("B_pfx")
o("s_waitcnt lgkmcnt(0)"); o("s_barrier")
for i in range(16):
    o(f"ds_add_rtn_u32 v{40+i}, v{40+i}, v57 offset:{NC+512}")
for i in range(16):
    o(f"s_waitcnt lgkmcnt({min(15,15-i)})" if i<15 else "s_waitcnt lgkmcnt(0)")
    o(f"v_lshlrev_b32 v{40+i}, 3, v{40+i}")
for i in range(16):
    o(f"ds_write_b64 v{40+i}, v[{8+2*i}:{9+2*i}] offset:{LIST}")
o("s_waitcnt lgkmcnt(0)"); o("s_barrier")
o("s_memtime s[100:101]") if DEBUG==2 else None; o("s_waitcnt lgkmcnt(0)") if DEBUG==2 else None; o("v_mov_b32 v242, s100") if DEBUG==2 else None
o("s_mov_b32 s68, s3")
lab("B_node")
o(f"s_cmp_ge_u32 s68, {BN}"); o("s_cbranch_scc1 B_nodes_done")
o("s_lshl_b32 s60, s68, 2"); o("v_mov_b32 v5, s60")
o(f"ds_read_b32 v6, v5 offset:{NC}"); o(f"ds_read_b32 v7, v5 offset:{NC+256}")
o(f"s_mul_i32 s60, s68, {RS}"); o("v_lshl_add_u32 v5, v2, 4, s60")
for ft in range(4): o(f"ds_read_b128 v[{128+ft*4}:{131+ft*4}], v5 offset:{P1+ft*64}")
o("s_add_u32 s60, s52, s68"); o("s_lshl_b32 s60, s60, 4"); o(f"s_add_u32 s60, s60, {POS4}"); o("v_mov_b32 v5, s60")
o("buffer_load_dwordx4 v[144:147], v5, s[44:47], 0 offen")
o("s_waitcnt lgkmcnt(0)"); o("v_readfirstlane_b32 s69, v6"); o("v_readfirstlane_b32 s86, v7")
for i in range(19): o(f"v_mov_b32 v{148+i}, 0")
def issue(B, M):
    o("v_add_u32 v5, s87, v1"); o(f"v_cmp_gt_u32 s[{M}:{M+1}], s69, v5")
    o("v_add_u32 v5, s86, v5"); o("v_lshlrev_b32 v5, 3, v5"); o(f"ds_read_b64 v[6:7], v5 offset:{LIST}"); o("s_waitcnt lgkmcnt(0)")
    o("v_and_b32 v8, 0xffff, v7")
    o("v_and_b32 v9, 1, v2"); o("v_lshlrev_b32 v9, 4, v9"); o("v_lshl_add_u32 v9, v6, 5, v9")
    o(f"buffer_load_dwordx4 v[{B}:{B+3}], v9, s[24:27], 0 offen")
    o("v_lshlrev_b32 v9, 7, v8"); o("v_lshl_add_u32 v9, v2, 4, v9")
    o(f"buffer_load_dwordx4 v[{B+4}:{B+7}], v9, s[20:23], 0 offen"); o(f"buffer_load_dwordx4 v[{B+8}:{B+11}], v9, s[20:23], 0 offen offset:64")
    o("v_lshlrev_b32 v9, 4, v8"); o(f"v_add_u32 v9, {POS4}, v9"); o(f"buffer_load_dwordx4 v[{B+12}:{B+15}], v9, s[44:47], 0 offen")
def compute(B, M):
    o("v_mov_b32 v10, 0xc6ea6000")
    for i in range(16): o(f"v_cndmask_b32 v{32+i}, v10, v{128+i}, s[{M}:{M+1}]")
    for c in range(3): o(f"v_sub_f32 v{B+12+c}, v{144+c}, v{B+12+c}"); o(f"v_cndmask_b32 v{B+12+c}, 0, v{B+12+c}, s[{M}:{M+1}]")
    o(f"v_mul_f32 v10, v{B+12}, v{B+12}"); o(f"v_fmac_f32 v10, v{B+13}, v{B+13}"); o(f"v_fmac_f32 v10, v{B+14}, v{B+14}")
    o("v_cvt_pk_bf16_f32 v10, v10, 0")
    o(f"v_cndmask_b32 v{B}, v10, v{B}, s[54:55]")
    for r in range(1, 4): o(f"v_cndmask_b32 v{B+r}, 0, v{B+r}, s[54:55]")
    o(f"v_cndmask_b32 v{B}, 0, v{B}, s[94:95]"); o("s_nop 1")
    for ft in range(4):
        D = f"v[{32+ft*4}:{35+ft*4}]"
        o(f"v_mfma_f32_16x16x32_bf16 {D}, v[{64+ft*4}:{67+ft*4}], v[{B+4}:{B+7}], {D}")
        o(f"v_mfma_f32_16x16x32_bf16 {D}, v[{80+ft*4}:{83+ft*4}], v[{B+8}:{B+11}], {D}")
        o(f"v_mfma_f32_16x16x32_bf16 {D}, v[{96+ft*4}:{99+ft*4}], v[{B}:{B+3}], {D}")
    o("s_nop 7"); o("v_mov_b32 v11, 0")
    for i in range(16): o(f"v_mul_f32 v{48+i}, 0xbfb8aa3b, v{32+i}")
    for i in range(16): o(f"v_exp_f32 v{48+i}, v{48+i}")
    for i in range(16): o(f"v_add_f32 v{48+i}, 1.0, v{48+i}")
    for i in range(16): o(f"v_rcp_f32 v{48+i}, v{48+i}")
    for i in range(16): o(f"v_mul_f32 v{48+i}, v{32+i}, v{48+i}")
    for i in range(16):
        o(f"v_add_f32 v{148+i}, v{148+i}, v{48+i}"); o(f"v_fmac_f32 v11, v{48+i}, v{112+i}")
    for c in range(3): o(f"v_fmac_f32 v{164+c}, v{B+12+c}, v11")
o("s_mov_b32 s87, 0")
o("s_cmp_ge_u32 s87, s69"); o("s_cbranch_scc1 B_tiles_done")
issue(168, 88)
lab("B_tile")
o("s_add_u32 s87, s87, 16"); o("s_cmp_ge_u32 s87, s69"); o("s_cbranch_scc1 B_lastA")
issue(184, 90)
o("s_waitcnt vmcnt(4)"); compute(168, 88)
o("s_add_u32 s87, s87, 16"); o("s_cmp_ge_u32 s87, s69"); o("s_cbranch_scc1 B_lastB")
issue(168, 88)
o("s_waitcnt vmcnt(4)"); compute(184, 90)
o("s_branch B_tile")
lab("B_lastA")
o("s_waitcnt vmcnt(0)"); compute(168, 88); o("s_branch B_tiles_done")
lab("B_lastB")
o("s_waitcnt vmcnt(0)"); compute(184, 90)
lab("B_tiles_done")
o("s_waitcnt vmcnt(0)")
for sh in (1, 2, 4, 8):
    for i in range(19):
        o(f"v_add_f32_dpp v{148+i}, v{148+i}, v{148+i} row_shr:{sh} row_mask:0xf bank_mask:0xf bound_ctrl:0")
    o("s_nop 1")
o("v_cmp_eq_u32 vcc, 15, v1"); o("s_and_saveexec_b64 s[58:59], vcc")
o(f"s_mul_i32 s60, s68, {RS}"); o("v_lshl_add_u32 v5, v2, 4, s60")
for i in range(16): o(f"ds_add_f32 v5, v{148+i} offset:{ACC + (i//4)*64 + (i%4)*4}")
o("v_mov_b32 v5, s60")
for c in range(3): o(f"ds_add_f32 v5, v{164+c} offset:{ACC + 256 + 4*c}")
o("s_mov_b64 exec, s[58:59]")
o("s_add_u32 s68, s68, 8"); o("s_branch B_node")
lab("B_nodes_done")
o("s_memtime s[100:101]") if DEBUG==2 else None; o("s_waitcnt lgkmcnt(0)") if DEBUG==2 else None; o("v_mov_b32 v243, s100") if DEBUG==2 else None
o("s_waitcnt lgkmcnt(0)"); o("s_barrier")
lab("B_next")
o("s_cmp_eq_u32 s61, 0"); o("s_cbranch_scc1 B_final")
o("s_add_u32 s62, s62, 1"); o(f"s_cmp_le_u32 s62, {GA}"); o("s_cbranch_scc1 B_round")
lab("B_final")
if DEBUG:
    o("s_cmp_lg_u32 s2, 0"); o("s_cbranch_scc1 B_nodbg")
    o("s_load_dwordx2 s[92:93], s[0:1], 72"); o("s_waitcnt lgkmcnt(0)")
    srd(96, 92, 256)
    o("v_cmp_gt_u32 vcc, 16, v0"); o("s_and_saveexec_b64 s[58:59], vcc")
    o("v_lshlrev_b32 v5, 2, v0"); o(f"ds_read_b32 v6, v5 offset:{DBGOFF}"); o("s_waitcnt lgkmcnt(0)")
    o("buffer_store_dword v6, v5, s[96:99], 0 offen"); o("s_mov_b64 exec, s[58:59]")
    lab("B_nodbg")
o("s_cmp_gt_u32 s3, 2"); o("s_cbranch_scc1 B_pos")
o("s_lshl_b32 s60, s3, 4"); o("v_add_u32 v6, s60, v1")
o("v_add_u32 v7, s52, v6"); o("v_lshlrev_b32 v7, 7, v7")
o("v_lshl_add_u32 v8, v2, 4, v7")
o("buffer_load_dwordx4 v[16:19], v8, s[20:23], 0 offen"); o("buffer_load_dwordx4 v[20:23], v8, s[20:23], 0 offen offset:64")
o(f"v_mul_u32_u24 v9, {RS}, v6"); o("v_lshl_add_u32 v9, v2, 5, v9")
for q in range(4): o(f"ds_read_b128 v[{32+q*4}:{35+q*4}], v9 offset:{ACC + (q//2)*128 + (q%2)*16}")
o("s_waitcnt lgkmcnt(0)")
for q in range(8): o(f"v_cvt_pk_bf16_f32 v{24+q}, v{32+2*q}, v{33+2*q}")
for ft in range(4):
    if ft == 0:
        o("v_and_b32 v4, 63, v0"); o("v_lshlrev_b32 v4, 4, v4")
        for k in range(16): load_frag_k(20 + k, 168 + k*4)
        o("s_waitcnt vmcnt(0)")
    D = f"v[{48}:{51}]"
    o(f"v_mfma_f32_16x16x32_bf16 {D}, v[{168+ft*16+0}:{171+ft*16+0}], v[16:19], 0")
    o(f"v_mfma_f32_16x16x32_bf16 {D}, v[{168+ft*16+4}:{171+ft*16+4}], v[20:23], {D}")
    o(f"v_mfma_f32_16x16x32_bf16 {D}, v[{168+ft*16+8}:{171+ft*16+8}], v[24:27], {D}")
    o(f"v_mfma_f32_16x16x32_bf16 {D}, v[{168+ft*16+12}:{171+ft*16+12}], v[28:31], {D}")
    o(f"v_lshl_add_u32 v10, v2, 3, v7"); o(f"buffer_load_dwordx2 v[52:53], v10, s[20:23], 0 offen offset:{ft*32}")
    o("s_nop 7"); o("s_waitcnt vmcnt(0)")
    for r in range(4):
        o(f"v_mul_f32 v54, 0xbfb8aa3b, v{48+r}"); o("v_exp_f32 v54, v54"); o("s_nop 0"); o("v_add_f32 v54, 1.0, v54")
        o("v_rcp_f32 v54, v54"); o("s_nop 0"); o(f"v_mul_f32 v54, v{48+r}, v54")
        o("v_cvt_pk_bf16_f32 v54, v54, 0"); o("v_lshlrev_b32 v54, 16, v54")
        o(f"v_lshlrev_b32 v55, 16, v{52+r//2}" if r % 2 == 0 else f"v_and_b32 v55, 0xffff0000, v{52+r//2}")
        o(f"v_add_f32 v{48+r}, v54, v55")
    o("v_cvt_pk_bf16_f32 v48, v48, v49"); o("v_cvt_pk_bf16_f32 v49, v50, v51")
    o(f"v_cmp_gt_u32 vcc, {BN}, v6"); o("s_and_saveexec_b64 s[58:59], vcc")
    o(f"buffer_store_dwordx2 v[48:49], v10, s[40:43], 0 offen offset:{ft*32}")
    o("s_mov_b64 exec, s[58:59]"); o("s_nop 2")
lab("B_pos")
o(f"v_cmp_gt_u32 vcc, {BN}, v0"); o("s_and_saveexec_b64 s[58:59], vcc")
o("v_add_u32 v5, s52, v0"); o("v_mul_u32_u24 v6, 6, v5"); o(f"v_mul_u32_u24 v7, {RS}, v0")
for c in range(3):
    o(f"buffer_load_ushort v{8+c}, v6, s[48:51], 0 offen offset:{2*c}"); o(f"ds_read_b32 v{12+c}, v7 offset:{ACC+256+4*c}")
o("s_waitcnt vmcnt(0) lgkmcnt(0)")
for c in range(3):
    o(f"v_lshlrev_b32 v{8+c}, 16, v{8+c}"); o(f"v_add_f32 v{8+c}, v{8+c}, v{12+c}"); o(f"v_cvt_pk_bf16_f32 v{8+c}, v{8+c}, 0")
    o(f"v_add_u32 v15, {1280000+2*c}, v6"); o(f"buffer_store_short v{8+c}, v15, s[40:43], 0 offen")
if DEBUG==2:
    o("s_mov_b64 exec, -1")
    o("s_memtime s[100:101]"); o("s_waitcnt lgkmcnt(0)"); o("v_mov_b32 v244, s100")
    o("s_cmp_lg_u32 s2, 7"); o("s_cbranch_scc1 B_done")
    o("s_load_dwordx2 s[92:93], s[0:1], 72"); o("s_waitcnt lgkmcnt(0)"); srd(96, 92, 256)
    o("v_cmp_eq_u32 vcc, 0, v0"); o("s_and_saveexec_b64 s[58:59], vcc")
    for n in range(5):
        o(f"v_sub_u32 v5, v{240+n}, v240"); o(f"v_mov_b32 v6, {4*n}"); o("buffer_store_dword v5, v6, s[96:99], 0 offen")
lab("B_done"); o("s_endpgm")

def kd(name, vg):
    return ['.section .rodata,"a"', ".p2align 6", f".amdhsa_kernel {name}", f"  .amdhsa_next_free_vgpr {vg}",
      "  .amdhsa_next_free_sgpr 102", f"  .amdhsa_accum_offset {vg}", "  .amdhsa_group_segment_fixed_size 0",
      "  .amdhsa_kernarg_size 88", "  .amdhsa_user_sgpr_count 2", "  .amdhsa_user_sgpr_kernarg_segment_ptr 1",
      "  .amdhsa_system_sgpr_workgroup_id_x 1", ".end_amdhsa_kernel"]
out += L + kd("egnn_bin_kernel", 32) + kd(NAME + "_kernel", 248)
open(sys.argv[2], "w").write("\n".join(out) + "\n")
```

```python
import sys
NAME = "gather_scatter__cheap_equivariant_egnn__graph"
N, E = 10000, 640000
NB, GA, CAP, BN = 250, 250, 32, 40
CH = E // GA
ENT, CNT, POS4, OVC, OVL = 0, 0x1000000, 0x1100000, 0x1200000, 0x1300000
WS_BYTES = 268435456
FRAG = 0x1800000
L = []
import os
DEBUG = int(os.environ.get('DBG','0'))
DBGOFF = int(os.environ.get('DBGOFF','0'))
def o(s): L.append("    " + s)
def lab(s): L.append(s + ":")

hdr = open(sys.argv[1]).read().split("\n")
head = [l for l in hdr if l.startswith(";") and "@launch" not in l and "Override" not in l and "grid=ceil" not in l]
out = head + [
 f"; @launch kernel=egnn_bin_kernel grid=({GA},1,1) block=(512,1,1) lds=1280",
 f"; @launch kernel={NAME}_kernel grid=({NB},1,1) block=(1024,1,1) lds=110592",
 '.amdgcn_target "amdgcn-amd-amdhsa--gfx950"', ".text"]

def srd(d, plo, nbytes):
    o(f"s_mov_b32 s{d}, s{plo}"); o(f"s_and_b32 s{d+1}, s{plo+1}, 0xffff")
    o(f"s_mov_b32 s{d+2}, {nbytes}"); o(f"s_mov_b32 s{d+3}, 0x00020000")

L += [".globl egnn_bin_kernel", ".p2align 8", ".type egnn_bin_kernel,@function", "egnn_bin_kernel:"]
o(f"s_cmp_ge_u32 s2, {GA}"); o("s_cbranch_scc1 A_done")
o("s_load_dwordx2 s[4:5], s[0:1], 8")
o("s_load_dwordx4 s[8:11], s[0:1], 24")
o("s_load_dwordx2 s[6:7], s[0:1], 80")
o("s_waitcnt lgkmcnt(0)")
srd(12, 8, E*4); srd(16, 10, E*4); srd(20, 6, WS_BYTES); srd(24, 4, N*6)
o(f"s_mul_i32 s3, s2, {CH}")
o("v_lshlrev_b32 v1, 2, v0")
o("v_mov_b32 v2, 0")
o("v_cmp_gt_u32 vcc, 0x140, v0"); o("s_and_saveexec_b64 s[28:29], vcc")
o("ds_write_b32 v1, v2")
o("s_mov_b64 exec, s[28:29]")
o("v_add_u32 v3, s3, v0")
o("v_lshlrev_b32 v4, 2, v3")
for i in range(5):
    o(f"s_movk_i32 s34, {i*2048}")
    o(f"buffer_load_dword v{10+i}, v4, s[16:19], s34 offen")
    o(f"buffer_load_dword v{18+i}, v4, s[12:15], s34 offen")
o("s_waitcnt lgkmcnt(0)"); o("s_barrier")
o("s_mov_b32 s30, 52429"); o(f"s_mul_i32 s31, s2, {CAP*8}")
o(f"s_mul_i32 s33, s2, {CH*8}"); o(f"s_add_u32 s33, s33, {OVL}")
for i in range(5):
    o(f"s_waitcnt vmcnt({8-2*i})")
    o(f"v_mul_u32_u24 v5, s30, v{10+i}"); o("v_lshrrev_b32 v5, 21, v5")
    o("v_lshlrev_b32 v6, 2, v5"); o("v_mov_b32 v7, 1")
    o("ds_add_rtn_u32 v8, v6, v7")
    o(f"v_lshlrev_b32 v9, 16, v{10+i}"); o(f"v_or_b32 v27, v9, v{18+i}")
    o(f"v_add_u32 v26, {i*512}, v3")
    o("s_waitcnt lgkmcnt(0)")
    o(f"v_mul_u32_u24 v9, {GA*CAP*8}, v5"); o("v_lshl_add_u32 v9, v8, 3, v9"); o("v_add_u32 v9, s31, v9")
    o(f"v_cmp_gt_u32 vcc, {CAP}, v8"); o("s_and_saveexec_b64 s[28:29], vcc")
    o("buffer_store_dwordx2 v[26:27], v9, s[20:23], 0 offen")
    o("s_andn2_b64 exec, s[28:29], exec"); o(f"s_cbranch_execz A_skip{i}")
    o("v_mov_b32 v6, 1024"); o("ds_add_rtn_u32 v8, v6, v7"); o("s_waitcnt lgkmcnt(0)")
    o("v_lshl_add_u32 v9, v8, 3, s33")
    o("buffer_store_dwordx2 v[26:27], v9, s[20:23], 0 offen")
    lab(f"A_skip{i}")
    o("s_mov_b64 exec, s[28:29]")
o("s_waitcnt lgkmcnt(0)"); o("s_barrier")
o(f"v_cmp_gt_u32 vcc, {NB}, v0"); o("s_and_saveexec_b64 s[28:29], vcc")
o("ds_read_b32 v5, v1"); o("s_waitcnt lgkmcnt(0)")
o(f"v_min_u32 v5, {CAP}, v5")
o(f"v_mul_u32_u24 v6, {GA*4}, v0"); o("s_lshl_b32 s32, s2, 2"); o(f"s_add_u32 s32, s32, {CNT}")
o("v_add_u32 v6, s32, v6")
o("buffer_store_dword v5, v6, s[20:23], 0 offen")
o("s_mov_b64 exec, s[28:29]")
o("v_cmp_eq_u32 vcc, 0, v0"); o("s_and_saveexec_b64 s[28:29], vcc")
o("v_mov_b32 v6, 1024"); o("ds_read_b32 v5, v6"); o("s_waitcnt lgkmcnt(0)")
o("s_lshl_b32 s32, s2, 2"); o(f"s_add_u32 s32, s32, {OVC}"); o("v_mov_b32 v6, s32")
o("buffer_store_dword v5, v6, s[20:23], 0 offen")
o("s_mov_b64 exec, s[28:29]")
o(f"v_cmp_gt_u32 vcc, {BN}, v0"); o("s_and_saveexec_b64 s[28:29], vcc")
o(f"s_mul_i32 s32, s2, {BN}"); o("v_add_u32 v5, s32, v0"); o("v_mul_u32_u24 v6, 6, v5")
for c in range(3): o(f"buffer_load_ushort v{12+c}, v6, s[24:27], 0 offen offset:{2*c}")
o("s_waitcnt vmcnt(0)")
for c in range(3): o(f"v_lshlrev_b32 v{12+c}, 16, v{12+c}")
o("v_mov_b32 v15, 0"); o("v_lshlrev_b32 v6, 4, v5"); o(f"v_add_u32 v6, {POS4}, v6")
o("buffer_store_dwordx4 v[12:15], v6, s[20:23], 0 offen")
o("s_mov_b64 exec, s[28:29]")
o("s_cmp_ge_u32 s2, 36"); o("s_cbranch_scc1 A_done")
o("v_cmp_gt_u32 vcc, 64, v0"); o("s_and_saveexec_b64 s[28:29], vcc"); o("s_cbranch_execz A_done")
o("s_load_dwordx2 s[36:37], s[0:1], 40"); o("s_load_dwordx2 s[38:39], s[0:1], 56"); o("s_waitcnt lgkmcnt(0)")
o("s_cmp_ge_u32 s2, 20"); o("s_cbranch_scc1 A_fh")
srd(40, 36, 145*128)
o("s_and_b32 s44, s2, 3"); o("s_lshr_b32 s45, s2, 2"); o("s_lshl_b32 s45, s45, 5"); o("s_add_u32 s45, s45, 64")
o("s_cmp_eq_u32 s45, 128"); o("s_cselect_b32 s45, 129, s45")
o("s_cmp_ge_u32 s2, 12"); o("s_cbranch_scc0 A_fgo"); o("s_sub_u32 s45, s45, 160"); o("s_branch A_fgo")
lab("A_fh")
srd(40, 38, 128*128)
o("s_sub_u32 s46, s2, 20"); o("s_lshr_b32 s44, s46, 2"); o("s_and_b32 s45, s46, 3"); o("s_lshl_b32 s45, s45, 5")
lab("A_fgo")
o("v_and_b32 v1, 15, v0"); o("v_lshrrev_b32 v2, 4, v0")
o("s_lshl_b32 s46, s45, 7"); o("s_lshl_b32 s47, s44, 5"); o("s_add_u32 s46, s46, s47")
o("v_lshlrev_b32 v5, 10, v2"); o("v_lshl_add_u32 v5, v1, 1, v5"); o("v_add_u32 v5, s46, v5")
for j in range(8): o(f"buffer_load_ushort v{10+j}, v5, s[40:43], 0 offen offset:{j*128}")
o("s_cmp_eq_u32 s45, 129"); o("s_cbranch_scc0 A_fpk")
o("v_cmp_eq_u32 vcc, 2, v2"); o("s_and_b64 exec, exec, vcc")
o("v_lshlrev_b32 v5, 1, v1"); o("v_add_u32 v5, s47, v5"); o("v_add_u32 v5, 0x4000, v5")
o("buffer_load_ushort v10, v5, s[40:43], 0 offen"); o("s_mov_b64 exec, -1")
lab("A_fpk")
o("s_waitcnt vmcnt(0)")
for q in range(4): o(f"v_lshl_or_b32 v{20+q}, v{11+2*q}, 16, v{10+2*q}")
o("s_lshl_b32 s46, s2, 10"); o(f"s_add_u32 s46, s46, {FRAG}"); o("v_lshl_add_u32 v5, v0, 4, s46")
o("buffer_store_dwordx4 v[20:23], v5, s[20:23], 0 offen")
lab("A_done"); o("s_endpgm")

P1, ACC, NC, FLG, WF, LIST = 0, 13056, 23936, 24704, 24832, 37120
RS = 272
L += [f".globl {NAME}_kernel", ".p2align 8", f".type {NAME}_kernel,@function", f"{NAME}_kernel:"]
o(f"s_cmp_ge_u32 s2, {NB}"); o("s_cbranch_scc1 B_done")
o("s_load_dwordx2 s[4:5], s[0:1], 0"); o("s_load_dwordx2 s[6:7], s[0:1], 16"); o("s_load_dwordx4 s[8:11], s[0:1], 40")
o("s_load_dwordx4 s[12:15], s[0:1], 56"); o("s_load_dwordx2 s[16:17], s[0:1], 80"); o("s_load_dwordx2 s[18:19], s[0:1], 8")
o("s_waitcnt lgkmcnt(0)")
srd(20, 4, N*128); srd(24, 6, E*32); srd(32, 10, 128); srd(40, 14, 1340000); srd(44, 16, WS_BYTES); srd(48, 18, N*6)
o("v_and_b32 v1, 15, v0"); o("v_bfe_u32 v2, v0, 4, 2"); o("v_lshrrev_b32 v3, 6, v0"); o("s_nop 0"); o("v_readfirstlane_b32 s3, v3")
o(f"s_mul_i32 s52, s2, {BN}")
o("v_cmp_gt_u32 s[54:55], 2, v2"); o("v_cmp_gt_u32 s[94:95], 3, v2")
o("v_and_b32 v4, 63, v0"); o("v_lshlrev_b32 v4, 4, v4")
def load_frag_k(k, dst):
    o(f"s_mov_b32 s53, {FRAG + k*1024}"); o(f"buffer_load_dwordx4 v[{dst}:{dst+3}], v4, s[44:47], s53 offen")
o("v_mov_b32 v8, 0")
for i in range(3):
    o("v_lshlrev_b32 v5, 2, v0"); o(f"v_add_u32 v5, {ACC + i*4096}, v5")
    o(f"v_cmp_gt_u32 vcc, {ACC+10880}, v5"); o("s_and_saveexec_b64 s[58:59], vcc"); o("ds_write_b32 v5, v8"); o("s_mov_b64 exec, s[58:59]")
o(f"v_mov_b32 v5, {FLG}"); o("ds_write_b32 v5, v8")
o("s_cmp_ge_u32 s3, 12"); o("s_cbranch_scc1 B_nowf")
o("s_lshl_b32 s53, s3, 10"); o(f"s_add_u32 s60, s53, {FRAG}"); o("buffer_load_dwordx4 v[12:15], v4, s[44:47], s60 offen")
o("v_add_u32 v5, s53, v4"); o("s_waitcnt vmcnt(0)"); o(f"ds_write_b128 v5, v[12:15] offset:{WF}")
lab("B_nowf")
for ft in range(4):
    o("v_lshlrev_b32 v5, 3, v2")
    for r in range(4): o(f"buffer_load_ushort v{96+ft*4+r}, v5, s[32:35], 0 offen offset:{ft*32 + 2*r}")
o("s_waitcnt lgkmcnt(0)"); o("s_barrier")
o(f"v_cmp_gt_u32 vcc, {GA}, v0"); o("s_and_saveexec_b64 s[58:59], vcc")
o("v_lshlrev_b32 v5, 2, v0"); o(f"v_add_u32 v5, {OVC}, v5"); o("buffer_load_dword v6, v5, s[44:47], 0 offen")
o("s_waitcnt vmcnt(0)"); o("v_cmp_ne_u32 vcc, 0, v6"); o("s_and_b64 exec, exec, vcc")
o(f"v_mov_b32 v5, {FLG}"); o("v_mov_b32 v6, 1"); o("ds_write_b32 v5, v6"); o("s_mov_b64 exec, s[58:59]")
o("s_cmp_gt_u32 s3, 2"); o("s_cbranch_scc1 B_p1done")
for k in range(8): load_frag_k(12 + k, 28 + k*4)
o("s_lshl_b32 s60, s3, 4"); o("s_add_u32 s60, s60, s52"); o("v_add_u32 v6, s60, v1")
o("v_lshlrev_b32 v6, 7, v6"); o("v_lshl_add_u32 v6, v2, 4, v6")
o("buffer_load_dwordx4 v[60:63], v6, s[20:23], 0 offen"); o("buffer_load_dwordx4 v[64:67], v6, s[20:23], 0 offen offset:64")
o("s_waitcnt vmcnt(0)")
for ft in range(4):
    o(f"v_mfma_f32_16x16x32_bf16 v[{12+ft*4}:{15+ft*4}], v[{28+ft*4}:{31+ft*4}], v[60:63], 0")
    o(f"v_mfma_f32_16x16x32_bf16 v[{12+ft*4}:{15+ft*4}], v[{44+ft*4}:{47+ft*4}], v[64:67], v[{12+ft*4}:{15+ft*4}]")
o("s_nop 15")
o("s_lshl_b32 s60, s3, 4"); o("v_add_u32 v6, s60, v1"); o(f"v_mul_u32_u24 v6, {RS}, v6"); o("v_lshl_add_u32 v6, v2, 4, v6")
for ft in range(4): o(f"ds_write_b128 v6, v[{12+ft*4}:{15+ft*4}] offset:{P1 + ft*64}")
lab("B_p1done")
o("s_waitcnt vmcnt(0)")
for i in range(16): o(f"v_lshlrev_b32 v{96+i}, 16, v{96+i}")
o("s_waitcnt lgkmcnt(0)"); o("s_barrier")
o(f"v_mov_b32 v5, {FLG}"); o("ds_read_b32 v5, v5"); o("s_waitcnt lgkmcnt(0)"); o("v_readfirstlane_b32 s61, v5")
o("s_mov_b32 s62, 0")
lab("B_round")
o("s_cmp_eq_u32 s62, 0"); o("s_cbranch_scc0 B_src_ovf")
o(f"s_mul_i32 s63, s2, {GA*CAP*8}"); o("s_mov_b32 s64, 0"); o("s_branch B_src_done")
lab("B_src_ovf")
o("s_sub_u32 s65, s62, 1"); o("s_lshl_b32 s66, s65, 2"); o(f"s_add_u32 s66, s66, {OVC}")
o("v_mov_b32 v5, s66"); o("buffer_load_dword v5, v5, s[44:47], 0 offen"); o("s_waitcnt vmcnt(0)"); o("v_readfirstlane_b32 s64, v5")
o("s_cmp_eq_u32 s64, 0"); o("s_cbranch_scc1 B_next")
o(f"s_mul_i32 s63, s65, {CH*8}"); o(f"s_add_u32 s63, s63, {OVL}")
lab("B_src_done")
o("v_cmp_gt_u32 vcc, 64, v0"); o("s_and_saveexec_b64 s[58:59], vcc")
o("v_lshlrev_b32 v5, 2, v0"); o("v_mov_b32 v8, 0"); o(f"ds_write_b32 v5, v8 offset:{NC}"); o("s_mov_b64 exec, s[58:59]")
o(f"s_mul_i32 s60, s2, {GA*4}"); o(f"s_add_u32 s60, s60, {CNT}")
for i in range(8):
    o(f"v_add_u32 v5, {i*1024}, v0")
    o("v_lshl_add_u32 v6, v5, 3, s63"); o(f"buffer_load_dwordx2 v[{12+2*i}:{13+2*i}], v6, s[44:47], 0 offen")
    o("v_lshrrev_b32 v6, 5, v5"); o("v_lshl_add_u32 v6, v6, 2, s60"); o(f"buffer_load_dword v{28+i}, v6, s[44:47], 0 offen")
o("s_waitcnt lgkmcnt(0)"); o("s_barrier")
o("s_waitcnt vmcnt(0)")
o("s_mov_b32 s67, 52429"); o("s_movk_i32 s98, 8000"); o("s_movk_i32 s99, 2560"); o("v_mov_b32 v36, 252"); o("v_mov_b32 v37, 1")
for i in range(8):
    o(f"v_add_u32 v5, {i*1024}, v0")
    o("s_cmp_eq_u32 s62, 0"); o(f"s_cbranch_scc0 B_v{i}")
    o("v_and_b32 v6, 31, v5"); o(f"v_cmp_lt_u32 vcc, v6, v{28+i}"); o("v_cmp_gt_u32 s[58:59], s98, v5"); o(f"s_branch B_w{i}")
    lab(f"B_v{i}")
    o("v_cmp_gt_u32 vcc, s64, v5"); o("v_cmp_gt_u32 s[58:59], s99, v5")
    lab(f"B_w{i}")
    o("s_and_b64 vcc, vcc, s[58:59]")
    o(f"v_lshrrev_b32 v6, 16, v{13+2*i}"); o("v_mul_u32_u24 v7, s67, v6"); o("v_lshrrev_b32 v7, 21, v7")
    o("v_cmp_eq_u32 s[58:59], s2, v7"); o("s_and_b64 vcc, vcc, s[58:59]")
    o("v_subrev_u32 v6, s52, v6"); o("v_lshlrev_b32 v6, 2, v6"); o("s_nop 0")
    o(f"v_cndmask_b32 v{28+i}, v36, v6, vcc"); o(f"ds_add_u32 v{28+i}, v37 offset:{NC}")
o("s_waitcnt lgkmcnt(0)"); o("s_barrier")
o("s_cmp_lg_u32 s3, 0"); o("s_cbranch_scc1 B_pfx")
o("v_lshlrev_b32 v5, 2, v0"); o(f"ds_read_b32 v6, v5 offset:{NC}"); o("s_waitcnt lgkmcnt(0)")
o("v_add_u32 v6, 15, v6"); o("v_and_b32 v6, 0xfffffff0, v6"); o("v_mov_b32 v7, v6")
for sh in (1, 2, 4, 8):
    o("s_nop 1"); o(f"v_add_u32_dpp v7, v7, v7 row_shr:{sh} row_mask:0xf bank_mask:0xf bound_ctrl:0")
o("s_nop 1"); o("v_add_u32_dpp v7, v7, v7 row_bcast:15 row_mask:0xa bank_mask:0xf")
o("s_nop 1"); o("v_add_u32_dpp v7, v7, v7 row_bcast:31 row_mask:0xc bank_mask:0xf")
o("v_sub_u32 v7, v7, v6")
o(f"ds_write_b32 v5, v7 offset:{NC+256}"); o(f"ds_write_b32 v5, v7 offset:{NC+512}")
lab("B_pfx")
o("s_waitcnt lgkmcnt(0)"); o("s_barrier")
for i in range(8): o(f"ds_add_rtn_u32 v{28+i}, v{28+i}, v37 offset:{NC+512}")
o("s_waitcnt lgkmcnt(0)")
for i in range(8): o(f"v_lshlrev_b32 v{28+i}, 3, v{28+i}")
for i in range(8): o(f"ds_write_b64 v{28+i}, v[{12+2*i}:{13+2*i}] offset:{LIST}")
o("s_waitcnt lgkmcnt(0)"); o("s_barrier")
o("s_mov_b32 s68, s3")
lab("B_node")
o(f"s_cmp_ge_u32 s68, {BN}"); o("s_cbranch_scc1 B_nodes_done")
o("s_lshl_b32 s60, s68, 2"); o("v_mov_b32 v5, s60")
o(f"ds_read_b32 v6, v5 offset:{NC}"); o(f"ds_read_b32 v7, v5 offset:{NC+256}")
o(f"s_mul_i32 s60, s68, {RS}"); o("v_lshl_add_u32 v116, v2, 4, s60")
o("s_add_u32 s60, s52, s68"); o("s_lshl_b32 s60, s60, 4"); o(f"s_add_u32 s60, s60, {POS4}"); o("v_mov_b32 v5, s60")
o("buffer_load_dwordx4 v[112:115], v5, s[44:47], 0 offen")
o("s_waitcnt lgkmcnt(0)"); o("v_readfirstlane_b32 s69, v6"); o("v_readfirstlane_b32 s86, v7")
for i in range(19): o(f"v_mov_b32 v{76+i}, 0")
def issue(B, M):
    o("v_add_u32 v5, s87, v1"); o(f"v_cmp_gt_u32 s[{M}:{M+1}], s69, v5")
    o("v_add_u32 v5, s86, v5"); o("v_lshlrev_b32 v5, 3, v5"); o(f"ds_read_b64 v[6:7], v5 offset:{LIST}"); o("s_waitcnt lgkmcnt(0)")
    o("v_and_b32 v8, 0xffff, v7")
    o("v_and_b32 v9, 1, v2"); o("v_lshlrev_b32 v9, 4, v9"); o("v_lshl_add_u32 v9, v6, 5, v9")
    o(f"buffer_load_dwordx4 v[{B}:{B+3}], v9, s[24:27], 0 offen")
    o("v_lshlrev_b32 v9, 7, v8"); o("v_lshl_add_u32 v9, v2, 4, v9")
    o(f"buffer_load_dwordx4 v[{B+4}:{B+7}], v9, s[20:23], 0 offen"); o(f"buffer_load_dwordx4 v[{B+8}:{B+11}], v9, s[20:23], 0 offen offset:64")
    o("v_lshlrev_b32 v9, 4, v8"); o(f"v_add_u32 v9, {POS4}, v9"); o(f"buffer_load_dwordx4 v[{B+12}:{B+15}], v9, s[44:47], 0 offen")
def compute(B, M):
    for ft in range(4): o(f"ds_read_b128 v[{12+ft*4}:{15+ft*4}], v116 offset:{P1+ft*64}")
    o(f"ds_read_b128 v[36:39], v4 offset:{WF}"); o(f"ds_read_b128 v[40:43], v4 offset:{WF+4096}")
    for c in range(3): o(f"v_sub_f32 v{B+12+c}, v{112+c}, v{B+12+c}"); o(f"v_cndmask_b32 v{B+12+c}, 0, v{B+12+c}, s[{M}:{M+1}]")
    o(f"v_mul_f32 v10, v{B+12}, v{B+12}"); o(f"v_fmac_f32 v10, v{B+13}, v{B+13}"); o(f"v_fmac_f32 v10, v{B+14}, v{B+14}")
    o("v_cvt_pk_bf16_f32 v10, v10, 0")
    o(f"v_cndmask_b32 v{B}, v10, v{B}, s[54:55]")
    for r in range(1, 4): o(f"v_cndmask_b32 v{B+r}, 0, v{B+r}, s[54:55]")
    o(f"v_cndmask_b32 v{B}, 0, v{B}, s[94:95]")
    o("v_mov_b32 v10, 0xc6ea6000"); o("s_waitcnt lgkmcnt(2)")
    for i in range(16): o(f"v_cndmask_b32 v{12+i}, v10, v{12+i}, s[{M}:{M+1}]")
    seq = [(ft, ks) for ft in range(4) for ks in range(3)]
    for n, (ft, ks) in enumerate(seq):
        W = 36 + (n % 2) * 4
        o("s_waitcnt lgkmcnt(1)" if n + 1 < len(seq) else "s_waitcnt lgkmcnt(0)")
        D = f"v[{12+ft*4}:{15+ft*4}]"; src = (B+4, B+8, B)[ks]
        o(f"v_mfma_f32_16x16x32_bf16 {D}, v[{W}:{W+3}], v[{src}:{src+3}], {D}")
        if n + 2 < len(seq):
            f2, k2 = seq[n+2]
            o(f"ds_read_b128 v[{W}:{W+3}], v4 offset:{WF + (k2*4+f2)*1024}")
        elif n + 1 < len(seq): o("s_nop 0")
    o("s_nop 7"); o("v_mov_b32 v11, 0")
    for hf in range(2):
        R = range(8)
        for i in R: o(f"v_mul_f32 v{28+i}, 0xbfb8aa3b, v{12+hf*8+i}")
        for i in R: o(f"v_exp_f32 v{28+i}, v{28+i}")
        for i in R: o(f"v_add_f32 v{28+i}, 1.0, v{28+i}")
        for i in R: o(f"v_rcp_f32 v{28+i}, v{28+i}")
        for i in R: o(f"v_mul_f32 v{28+i}, v{12+hf*8+i}, v{28+i}")
        for i in R:
            o(f"v_add_f32 v{76+hf*8+i}, v{76+hf*8+i}, v{28+i}"); o(f"v_fmac_f32 v11, v{28+i}, v{96+hf*8+i}")
    for c in range(3): o(f"v_fmac_f32 v{92+c}, v{B+12+c}, v11")
o("s_mov_b32 s87, 0")
o("s_cmp_ge_u32 s87, s69"); o("s_cbranch_scc1 B_tiles_done")
issue(44, 88)
lab("B_tile")
o("s_add_u32 s87, s87, 16"); o("s_cmp_ge_u32 s87, s69"); o("s_cbranch_scc1 B_lastA")
issue(60, 90)
o("s_waitcnt vmcnt(4)"); compute(44, 88)
o("s_add_u32 s87, s87, 16"); o("s_cmp_ge_u32 s87, s69"); o("s_cbranch_scc1 B_lastB")
issue(44, 88)
o("s_waitcnt vmcnt(4)"); compute(60, 90)
o("s_branch B_tile")
lab("B_lastA")
o("s_waitcnt vmcnt(0)"); compute(44, 88); o("s_branch B_tiles_done")
lab("B_lastB")
o("s_waitcnt vmcnt(0)"); compute(60, 90)
lab("B_tiles_done")
o("s_waitcnt vmcnt(0)")
for sh in (1, 2, 4, 8):
    for i in range(19):
        o(f"v_add_f32_dpp v{76+i}, v{76+i}, v{76+i} row_shr:{sh} row_mask:0xf bank_mask:0xf bound_ctrl:0")
    o("s_nop 1")
o("v_cmp_eq_u32 vcc, 15, v1"); o("s_and_saveexec_b64 s[58:59], vcc")
for i in range(16): o(f"ds_add_f32 v116, v{76+i} offset:{ACC + (i//4)*64 + (i%4)*4}")
o(f"s_mul_i32 s60, s68, {RS}"); o("v_mov_b32 v5, s60")
for c in range(3): o(f"ds_add_f32 v5, v{92+c} offset:{ACC + 256 + 4*c}")
o("s_mov_b64 exec, s[58:59]")
o("s_add_u32 s68, s68, 16"); o("s_branch B_node")
lab("B_nodes_done")
o("s_waitcnt lgkmcnt(0)"); o("s_barrier")
lab("B_next")
o("s_cmp_eq_u32 s61, 0"); o("s_cbranch_scc1 B_final")
o("s_add_u32 s62, s62, 1"); o(f"s_cmp_le_u32 s62, {GA}"); o("s_cbranch_scc1 B_round")
lab("B_final")
o("s_cmp_gt_u32 s3, 11"); o("s_cbranch_scc1 B_pos")
o("s_mul_i32 s70, s3, 43"); o("s_lshr_b32 s70, s70, 7"); o("s_mul_i32 s71, s70, 3"); o("s_sub_u32 s71, s3, s71")
o("s_lshl_b32 s60, s71, 4"); o("v_add_u32 v6, s60, v1")
o("v_add_u32 v7, s52, v6"); o("v_lshlrev_b32 v7, 7, v7"); o("v_lshl_add_u32 v8, v2, 4, v7")
o("buffer_load_dwordx4 v[16:19], v8, s[20:23], 0 offen"); o("buffer_load_dwordx4 v[20:23], v8, s[20:23], 0 offen offset:64")
o("s_lshl_b32 s72, s70, 12"); o(f"s_add_u32 s72, s72, {FRAG + 20*1024}")
for ks in range(4): o(f"buffer_load_dwordx4 v[{60+ks*4}:{63+ks*4}], v4, s[44:47], s72 offen offset:{ks*1024}")
o("s_lshl_b32 s73, s70, 5"); o("v_lshl_add_u32 v10, v2, 3, v7"); o("v_add_u32 v10, s73, v10")
o("buffer_load_dwordx2 v[52:53], v10, s[20:23], 0 offen")
o(f"v_mul_u32_u24 v9, {RS}, v6"); o("v_lshl_add_u32 v9, v2, 5, v9")
for q in range(4): o(f"ds_read_b128 v[{32+q*4}:{35+q*4}], v9 offset:{ACC + (q//2)*128 + (q%2)*16}")
o("s_waitcnt lgkmcnt(0)")
for q in range(8): o(f"v_cvt_pk_bf16_f32 v{24+q}, v{32+2*q}, v{33+2*q}")
o("s_waitcnt vmcnt(0)")
o("v_mfma_f32_16x16x32_bf16 v[48:51], v[60:63], v[16:19], 0")
o("v_mfma_f32_16x16x32_bf16 v[48:51], v[64:67], v[20:23], v[48:51]")
o("v_mfma_f32_16x16x32_bf16 v[48:51], v[68:71], v[24:27], v[48:51]")
o("v_mfma_f32_16x16x32_bf16 v[48:51], v[72:75], v[28:31], v[48:51]")
o("s_nop 9")
for r in range(4):
    o(f"v_mul_f32 v54, 0xbfb8aa3b, v{48+r}"); o("v_exp_f32 v54, v54"); o("s_nop 0"); o("v_add_f32 v54, 1.0, v54")
    o("v_rcp_f32 v54, v54"); o("s_nop 0"); o(f"v_mul_f32 v54, v{48+r}, v54")
    o("v_cvt_pk_bf16_f32 v54, v54, 0"); o("v_lshlrev_b32 v54, 16, v54")
    o(f"v_lshlrev_b32 v55, 16, v{52+r//2}" if r % 2 == 0 else f"v_and_b32 v55, 0xffff0000, v{52+r//2}")
    o(f"v_add_f32 v{48+r}, v54, v55")
o("v_cvt_pk_bf16_f32 v48, v48, v49"); o("v_cvt_pk_bf16_f32 v49, v50, v51")
o(f"v_cmp_gt_u32 vcc, {BN}, v6"); o("s_and_saveexec_b64 s[58:59], vcc")
o("buffer_store_dwordx2 v[48:49], v10, s[40:43], 0 offen"); o("s_mov_b64 exec, s[58:59]")
lab("B_pos")
o(f"v_cmp_gt_u32 vcc, {BN}, v0"); o("s_and_saveexec_b64 s[58:59], vcc")
o("v_add_u32 v5, s52, v0"); o("v_mul_u32_u24 v6, 6, v5"); o(f"v_mul_u32_u24 v7, {RS}, v0")
for c in range(3):
    o(f"buffer_load_ushort v{8+c}, v6, s[48:51], 0 offen offset:{2*c}"); o(f"ds_read_b32 v{12+c}, v7 offset:{ACC+256+4*c}")
o("s_waitcnt vmcnt(0) lgkmcnt(0)")
for c in range(3):
    o(f"v_lshlrev_b32 v{8+c}, 16, v{8+c}"); o(f"v_add_f32 v{8+c}, v{8+c}, v{12+c}"); o(f"v_cvt_pk_bf16_f32 v{8+c}, v{8+c}, 0")
    o(f"v_add_u32 v15, {1280000+2*c}, v6"); o(f"buffer_store_short v{8+c}, v15, s[40:43], 0 offen")
lab("B_done"); o("s_endpgm")

def kd(name, vg):
    return ['.section .rodata,"a"', ".p2align 6", f".amdhsa_kernel {name}", f"  .amdhsa_next_free_vgpr {vg}",
      "  .amdhsa_next_free_sgpr 102", f"  .amdhsa_accum_offset {vg}", "  .amdhsa_group_segment_fixed_size 0",
      "  .amdhsa_kernarg_size 88", "  .amdhsa_user_sgpr_count 2", "  .amdhsa_user_sgpr_kernarg_segment_ptr 1",
      "  .amdhsa_system_sgpr_workgroup_id_x 1", ".end_amdhsa_kernel"]
out += L + kd("egnn_bin_kernel", 32) + kd(NAME + "_kernel", 120)
open(sys.argv[2], "w").write("\n".join(out) + "\n")
```
